```python
import torch

def _softmax(x, axis=-1):
    return torch.softmax(x, dim=axis)
def _gelu(x):
    return torch.nn.functional.gelu(x, approximate="tanh")
def _silu(x):
    return torch.nn.functional.silu(x)
def _sigmoid(x):
    return torch.sigmoid(x)
def _layernorm(x, axis=-1, eps=1e-5):
    m = x.mean(dim=axis, keepdim=True)
    v = x.var(dim=axis, keepdim=True, unbiased=False)
    return (x - m) / torch.sqrt(v + eps)
def _scatter_add(tgt, idx, src, axis=0):
    return tgt.clone().index_add_(axis, idx, src)
def _segment_sum(src, seg, n):
    out = torch.zeros((n,) + src.shape[1:], dtype=src.dtype)
    return out.index_add_(0, seg, src)
def _pad(x, pw):
    flat = tuple(v for pair in reversed(pw) for v in pair)
    return torch.nn.functional.pad(x, flat)

kernel_name = 'sequential_preLN__linear_kernel_hedgehog__glu_gated_glu__prompt'

def setup_inputs():

    _w = (lambda a: (lambda t: t.to(torch.bfloat16) if t.is_floating_point() else t)(torch.as_tensor(a)))
    def _A_setup():
        B, S, D, H = 1, 2048, 448, 16
        Dh = D // H
        return {
            "x": _w((lambda *s: torch.randn(*s, dtype=torch.bfloat16) * 0.05)(B, S, D)),
            "wqkv": _w((lambda *s: torch.randn(*s, dtype=torch.bfloat16) * 0.2)(D, 3 * D)),
            "w_phi": _w((lambda *s: torch.randn(*s, dtype=torch.bfloat16) * 0.2)(H, Dh, Dh) * (Dh ** -0.5)),
            "wo": _w((lambda *s: torch.randn(*s, dtype=torch.bfloat16) * 0.05)(D, D)),
        }
    _A_in = _A_setup()

    def _B_setup():
        B, S, D, F = 1, 2048, 448, 1792
        return {
            "x": _w((lambda *s: torch.randn(*s, dtype=torch.bfloat16) * 0.05)(B, S, D)),
            "w_gate": _w((lambda *s: torch.randn(*s, dtype=torch.bfloat16) * 0.05)(D, F)),
            "w_up": _w((lambda *s: torch.randn(*s, dtype=torch.bfloat16) * 0.05)(D, F)),
            "w_down": _w((lambda *s: torch.randn(*s, dtype=torch.bfloat16) * 0.05)(F, D)),
        }
    _B_in = _B_setup()

    return {
        "A_x": _A_in["x"],
        "A_wqkv": _A_in["wqkv"],
        "A_w_phi": _A_in["w_phi"],
        "A_wo": _A_in["wo"],
        "B_x": _B_in["x"],
        "B_w_gate": _B_in["w_gate"],
        "B_w_up": _B_in["w_up"],
        "B_w_down": _B_in["w_down"],
    }

def reference(A_x, A_wqkv, A_w_phi, A_wo, B_x, B_w_gate, B_w_up, B_w_down):
    def _A_ref(x, wqkv, w_phi, wo):
        B, S, D = x.shape
        H = 16; Dh = D // H
        qkv = (lambda x, *d: x.permute(*d))((x @ wqkv).reshape(B, S, 3, H, Dh), 2, 0, 3, 1, 4)
        q, k, v = qkv[0], qkv[1], qkv[2]
        pq = torch.einsum("bhsd,hdf->bhsf", q, w_phi)
        pk = torch.einsum("bhsd,hdf->bhsf", k, w_phi)
        phi_q = torch.concatenate([_softmax(pq, axis=-1), _softmax(-pq, axis=-1)], axis=-1)
        phi_k = torch.concatenate([_softmax(pk, axis=-1), _softmax(-pk, axis=-1)], axis=-1)
        kv = torch.einsum("bhsf,bhsd->bhfd", phi_k, v)
        z  = torch.einsum("bhsf->bhf", phi_k)
        num = torch.einsum("bhqf,bhfd->bhqd", phi_q, kv)
        den = torch.einsum("bhqf,bhf->bhq", phi_q, z)[..., None] + 1e-6
        o = num / den
        return (lambda x, *d: x.permute(*d))(o, 0, 2, 1, 3).reshape(B, S, D) @ wo

    def _B_ref(x, w_gate, w_up, w_down):
        g = torch.einsum("bsd,df->bsf", x, w_gate)
        u = torch.einsum("bsd,df->bsf", x, w_up)
        h = _sigmoid(g) * u
        return torch.einsum("bsf,fd->bsd", h, w_down)

    x = A_x
    h = x + _A_ref(_layernorm(x, axis=-1), A_wqkv, A_w_phi, A_wo)
    h2 = h + _B_ref(_layernorm(h, axis=-1), B_w_gate, B_w_up, B_w_down)
    return h2
```

```python
import re

TRANS = ("v_exp_f32", "v_log_f32", "v_rcp_f32", "v_rsq_f32", "v_sqrt_f32", "v_sin_f32", "v_cos_f32")

def _regs(tok):
    tok = tok.strip()
    tok = tok.lstrip('-')
    if tok.startswith("abs(") or tok.startswith("|"):
        tok = tok.replace("abs(", "").replace(")", "").replace("|", "")
    m = re.fullmatch(r"([vas])(\d+)", tok)
    if m: return {m.group(1) + m.group(2)}
    m = re.fullmatch(r"([vas])\[(\d+):(\d+)\]", tok)
    if m: return {m.group(1) + str(i) for i in range(int(m.group(2)), int(m.group(3)) + 1)}
    if tok in ("vcc", "vcc_lo", "vcc_hi"): return {"vcc"}
    if tok in ("exec", "exec_lo", "exec_hi"): return {"exec"}
    if tok == "m0": return {"m0"}
    return set()

class Ins:
    __slots__ = ("text", "op", "dst", "src", "kind", "passes", "srcc", "dstart", "lds_dma", "store_data", "ab")
    pass

def parse(text):
    t = text.split(";")[0].strip()
    ins = Ins(); ins.text = text; ins.dst = set(); ins.src = set(); ins.kind = "other"; ins.passes = 0
    ins.srcc = set(); ins.lds_dma = False; ins.store_data = set(); ins.ab = set()
    if not t or t.endswith(":") or t.startswith("."):
        ins.op = ""; ins.kind = "label" if t.endswith(":") else "none"; return ins
    parts = t.split(None, 1)
    op = parts[0]; ins.op = op
    rest = parts[1] if len(parts) > 1 else ""
    ops = [o.strip() for o in re.split(r",(?![^\[]*\])", rest)] if rest else []
    clean = []
    mods = []
    for o in ops:
        w = o.split()
        if not w: continue
        clean.append(w[0]); mods += w[1:]
    ops = clean
    R = [_regs(o) for o in ops]
    U = lambda l: set().union(*l) if l else set()
    if op.startswith("v_mfma"):
        ins.kind = "mfma"; ins.dst = R[0]; ins.src = U(R[1:]); ins.srcc = R[3]; ins.ab = R[1] | R[2]
        ins.passes = 8 if "32x32x16" in op else 4
    elif op.startswith("v_cmp"):
        ins.kind = "valu"; ins.dst = R[0]; ins.src = U(R[1:])
    elif op in ("v_readfirstlane_b32", "v_readlane_b32"):
        ins.kind = "valu"; ins.dst = R[0]; ins.src = U(R[1:])
    elif op.startswith("v_permlane"):
        ins.kind = "valu"; ins.dst = R[0] | R[1]; ins.src = R[0] | R[1]
    elif op.startswith("v_add_co") or op.startswith("v_addc_co") or op.startswith("v_sub_co"):
        ins.kind = "valu"; ins.dst = R[0] | R[1]; ins.src = U(R[2:])
    elif op.startswith("v_"):
        ins.kind = "valu"; ins.dst = R[0]; ins.src = U(R[1:])
        if op.startswith("v_fmac") or op.startswith("v_dot2c") or op.startswith("v_writelane"): ins.src |= R[0]
        if op.startswith("v_cndmask") and len(ops) == 3: ins.src |= {"vcc"}
    elif op.startswith("buffer_") or op.startswith("global_"):
        ins.kind = "vmem"
        lds = "lds" in mods or "_lds_" in op
        if lds:
            ins.lds_dma = True; ins.src = U(R) | {"m0"}
        elif "_load" in op:
            ins.dst = R[0]; ins.src = U(R[1:])
            if "d16" in op: ins.src |= R[0]
        elif "_store" in op or "_atomic" in op:
            ins.src = U(R)
            data = R[0] if op.startswith("buffer_") else R[1]
            if "x3" in op or "x4" in op: ins.store_data = data
            if "_atomic" in op and "sc0" in mods: ins.dst = R[0]
        else:
            pass
    elif op.startswith("ds_"):
        ins.kind = "ds"
        if op.startswith("ds_read") or op.startswith("ds_bpermute") or op.startswith("ds_permute") or op.startswith("ds_swizzle"):
            ins.dst = R[0]; ins.src = U(R[1:])
        else:
            ins.src = U(R)
    elif op.startswith("s_"):
        ins.kind = "salu"
        if op in ("s_waitcnt", "s_barrier", "s_nop", "s_endpgm", "s_branch", "s_sleep", "s_setprio") or op.startswith("s_cbranch"):
            pass
        elif op.startswith("s_cmp"):
            ins.src = U(R)
        elif op.startswith("s_load") or op in ("s_memtime", "s_memrealtime"):
            ins.kind = "smem"; ins.dst = R[0]; ins.src = U(R[1:])
        else:
            ins.dst = R[0]; ins.src = U(R[1:])
            if "saveexec" in op: ins.dst = ins.dst | {"exec"}
    return ins

def need(p, c):
    n = 0
    isv = lambda s: {r for r in s if r[0] in "va" and r not in ("vcc",)}
    iss = lambda s: {r for r in s if r[0] == "s" or r == "vcc"}
    if p.kind == "valu":
        pv = isv(p.dst); ps = iss(p.dst)
        if c.kind == "mfma" and pv & c.src: n = max(n, 2)
        if p.op in TRANS and c.kind in ("valu",) and c.op not in TRANS and pv & c.src: n = max(n, 1)
        if p.op in TRANS and c.kind in ("valu",) and c.op in TRANS and pv & c.src: n = max(n, 1)
        if c.op.startswith("v_permlane") and pv & c.src: n = max(n, 2)
        if "dpp" in c.text and pv & c.src: n = max(n, 2)
        if c.op in ("v_readfirstlane_b32", "v_readlane_b32") and pv & c.src: n = max(n, 1)
        if ps:
            if c.kind == "valu" and ps & c.src: n = max(n, 2)
            if c.op in ("v_readlane_b32", "v_writelane_b32") and ps & c.src: n = max(n, 4)
            if c.kind == "vmem" and ps & c.src: n = max(n, 5)
            if c.kind in ("salu", "smem") and ps & c.src: n = max(n, 1)
        if p.op.startswith("v_dot2"):
            if c.op == p.op:
                toks = c.text.split(";")[0].split(None, 1)[1].split(",")
                ab = set()
                if c.op.startswith("v_dot2c"): ab = _regs(toks[1]) | _regs(toks[2])
                else: ab = _regs(toks[1]) | _regs(toks[2])
                if pv & ab: n = max(n, 3)
            elif pv & (c.src | c.dst): n = max(n, 3)
    if p.kind == "mfma":
        P = p.passes
        if c.kind == "mfma":
            if p.dst & c.ab: n = max(n, P + 4)
            if p.dst & c.srcc:
                if not (p.dst == c.srcc and p.passes == c.passes): n = max(n, P + 2)
        elif c.kind in ("valu", "vmem", "ds"):
            if p.dst & (c.src | c.dst): n = max(n, P + 4)
        if c.kind == "valu" and (p.srcc & c.dst): n = max(n, P - 1)
    if p.kind == "salu" and "m0" in p.dst and c.lds_dma: n = max(n, 1)
    if p.kind == "vmem" and p.store_data:
        if c.kind == "valu" and p.store_data & c.dst: n = max(n, 2)
        elif p.store_data & c.dst: n = max(n, 1)
    return n

class Asm:
    def __init__(self):
        self.out = []
        self.hist = []
        self.alts = []
        self._snap = []
        self.vmq = []
    def skip_begin(self):
        self._snap.append(list(self.hist))
    def skip_end(self, label):
        self.out.append(label + ":")
        self.alts.append(self._snap.pop())
    def reset_hist(self):
        self.out.append("    s_nop 15"); self.out.append("    s_nop 3")
        self.hist = []; self.alts = []
    def vm(self, text, tag):
        self(text); self.vmq.append(tag)
    def vm_wait(self, tags, extra=""):
        if isinstance(tags, str): tags = [tags]
        last = -1
        for i, t in enumerate(self.vmq):
            if t in tags: last = i
        if last < 0:
            if extra: self("s_waitcnt " + extra)
            return
        n = len(self.vmq) - 1 - last
        n = min(n, 63)
        self("s_waitcnt vmcnt(%d) %s" % (n, extra))
        self.vmq = self.vmq[len(self.vmq) - n:] if n else []
    def raw(self, s):
        self.out.append(s)
    def label(self, l):
        self.out.append(l + ":")
    def __call__(self, text):
        for line in text.split("\n"):
            line = line.strip()
            if not line: continue
            self._emit(line)
    def _emit(self, line):
        ins = parse(line)
        if ins.kind in ("label", "none"):
            self.out.append(line); return
        req = 0
        for h in [self.hist] + self.alts:
            dist = 0
            for p in reversed(h):
                n = need(p, ins)
                if n > dist: req = max(req, n - dist)
                dist += p._states
                if dist > 24: break
        new = []
        while req > 0:
            k = min(req, 16)
            self.out.append("    s_nop %d" % (k - 1))
            new.append(_Nop(k)); req -= k
        self.out.append("    " + line)
        if ins.op == "s_nop":
            k = int(line.split()[1], 0) + 1
            new.append(_Nop(k))
        else:
            new.append(_Wrap(ins))
        self.hist += new
        for h in self.alts: h += new
        if len(self.hist) > 64: self.hist = self.hist[-40:]
        keep = []
        for h in self.alts:
            c = 0; same = True
            for x, y in zip(reversed(h), reversed(self.hist)):
                if x is not y: break
                c += x._states
            if c <= 24: keep.append(h)
        self.alts = keep
    def text(self):
        return "\n".join(self.out) + "\n"

class _Nop:
    def __init__(s, k):
        s._states = k; s.kind = "nop"; s.op = "s_nop"; s.dst = set(); s.src = set(); s.srcc = set(); s.passes = 0
        s.store_data = set(); s.lds_dma = False; s.text = ""; s.ab = set()
class _Wrap:
    def __init__(s, i):
        s._states = 1
        for a in Ins.__slots__:
            if hasattr(i, a): setattr(s, a, getattr(i, a))
```

```python
from asmlib import Asm
from layout import *

KA = dict(x=0, wqkv=8, wphi=16, wo=24, bx=32, wg=40, wu=48, wd=56, out=64, dbg=72, ws=80)
NBYTES = dict(x=S*D*2, wqkv=D*3*D*2, wphi=H*DH*DH*2, wo=D*D*2, wg=D*F*2, wu=D*F*2, wd=F*D*2, out=S*D*2, dbg=256, ws=WS_SIZE)

def kernel_head(a, name):
    a.raw(".globl %s\n.p2align 8\n.type %s,@function\n%s:" % (name, name, name))

def kernel_desc(name, vgpr, sgpr=102, accum=None):
    if accum is None: accum = (vgpr + 3) // 4 * 4
    accum = min(accum, 256)
    return """.p2align 6
.amdhsa_kernel %s
  .amdhsa_next_free_vgpr %d
  .amdhsa_next_free_sgpr %d
  .amdhsa_accum_offset %d
  .amdhsa_group_segment_fixed_size 0
  .amdhsa_kernarg_size 88
  .amdhsa_user_sgpr_count 2
  .amdhsa_user_sgpr_kernarg_segment_ptr 1
  .amdhsa_system_sgpr_workgroup_id_x 1
.end_amdhsa_kernel
""" % (name, vgpr, sgpr, accum)

def load_srds(a, specs):
    for nm, sb in specs:
        a("s_load_dwordx2 s[%d:%d], s[0:1], %d" % (sb, sb + 1, KA[nm]))
    for nm, sb in specs:
        a("s_mov_b32 s%d, 0x%x" % (sb + 2, NBYTES[nm]))
        a("s_mov_b32 s%d, 0x00020000" % (sb + 3))
    a("s_waitcnt lgkmcnt(0)")
```

```python
from gen_common import *

def gen_k0(a, name="k0_kernel"):
    kernel_head(a, name)
    a("s_cmp_ge_u32 s2, 169")
    a("s_cbranch_scc1 K0_done")
    load_srds(a, [("wg", 8), ("wu", 12), ("wd", 16), ("wo", 20), ("ws", 24)])
    a("s_mov_b32 s30, 0x05040100")
    a("s_mov_b32 s31, 0x07060302")
    a("s_mov_b32 s32, 0x3f803f80")
    a("s_cmp_ge_u32 s2, 161")
    a("s_cbranch_scc1 K0_wo")
    a("s_cmp_ge_u32 s2, 112")
    a("s_cbranch_scc1 K0_dn")
    a("v_lshlrev_b32 v1, 2, v0")
    a("v_mov_b32 v2, 0")
    a("ds_write_b32 v1, v2")
    a("v_lshrrev_b32 v3, 7, v0")
    a("v_readfirstlane_b32 s33, v3")
    a("s_cmp_eq_u32 s33, 0")
    a("s_cselect_b32 s4, s8, s12")
    a("s_cselect_b32 s5, s9, s13")
    a("s_mov_b32 s6, s10")
    a("s_mov_b32 s7, s11")
    a("v_and_b32 v4, 127, v0")
    a("v_and_b32 v5, 1, v4")
    a("v_lshrrev_b32 v6, 1, v4")
    a("v_lshrrev_b32 v7, 1, v6")
    a("v_and_b32 v8, 1, v6")
    a("s_waitcnt lgkmcnt(0)")
    a("s_barrier")
    a("v_cmp_gt_u32 vcc, 112, v4")
    a("s_and_saveexec_b64 s[34:35], vcc")
    a("s_cbranch_execz K0_gu_skip")
    a("s_lshl_b32 s36, s2, 5")
    a("v_lshlrev_b32 v9, 4, v5")
    a("v_add_u32 v9, s36, v9")
    a("v_mul_u32_u24 v10, %d, v8" % (14 * 3584))
    a("v_add_u32 v9, v9, v10")
    a("v_lshlrev_b32 v11, 3, v7")
    a("s_movk_i32 s37, 4682")
    a("s_movk_i32 s38, 3584")
    for j in range(8):
        a("v_add_u32 v12, %d, v11" % j)
        a("v_mul_u32_u24 v13, s37, v12")
        a("v_lshrrev_b32 v13, 16, v13")
        a("v_mad_u32_u24 v12, v13, 14, v12")
        a("v_mad_u32_u24 v12, v12, s38, v9")
        a("buffer_load_dwordx4 v[%d:%d], v12, s[4:7], 0 offen" % (16 + 4*j, 19 + 4*j))
    a("s_mul_i32 s36, s2, 28")
    a("v_add_u32 v12, s36, v7")
    a("v_lshlrev_b32 v12, 6, v12")
    a("v_lshl_add_u32 v12, v8, 5, v12")
    a("v_lshl_add_u32 v12, v3, 4, v12")
    a("v_lshl_add_u32 v12, v5, 3, v12")
    a("v_lshlrev_b32 v12, 4, v12")
    a("s_mov_b32 s36, 0x%x" % WS_WGU)
    a("v_lshlrev_b32 v13, 6, v3")
    a("v_lshl_add_u32 v13, v5, 5, v13")
    a("s_waitcnt vmcnt(0)")
    for cc in range(8):
        sel = "s30" if cc % 2 == 0 else "s31"
        for jj in range(4):
            a("v_perm_b32 v%d, v%d, v%d, %s" % (48 + 4*cc + jj, 16 + 4*(2*jj+1) + (cc >> 1), 16 + 4*(2*jj) + (cc >> 1), sel))
    a("v_mov_b32 v14, s32")
    for cc in range(8):
        a("buffer_store_dwordx4 v[%d:%d], v12, s[24:27], s36 offen offset:%d" % (48 + 4*cc, 51 + 4*cc, 16 * cc))
        a("v_mov_b32 v%d, 0" % (80 + cc))
    for jj in range(4):
        for cc in range(8):
            a("v_dot2_f32_bf16 v%d, v%d, v14, v%d" % (80 + cc, 48 + 4*cc + jj, 80 + cc))
    for cc in range(8):
        a("ds_add_f32 v13, v%d offset:%d" % (80 + cc, 4 * cc))
    a.label("K0_gu_skip")
    a("s_mov_b64 exec, s[34:35]")
    a("s_waitcnt lgkmcnt(0)")
    a("s_barrier")
    a("v_cmp_gt_u32 vcc, 32, v0")
    a("s_and_saveexec_b64 s[34:35], vcc")
    a("s_cbranch_execz K0_done")
    a("ds_read_b32 v2, v1")
    a("s_lshl_b32 s36, s2, 7")
    a("s_add_u32 s36, s36, 0x%x" % WS_CS)
    a("s_waitcnt lgkmcnt(0)")
    a("buffer_store_dword v2, v1, s[24:27], s36 offen")
    a("s_branch K0_done")
    a.label("K0_dn")
    a("s_sub_u32 s33, s2, 112")
    a("s_lshl_b32 s33, s33, 8")
    a("v_add_u32 v4, s33, v0")
    a("s_mov_b32 s37, %d" % ((1 << 20) // 56 + 1))
    a("v_mul_u32_u24 v6, s37, v4")
    a("v_lshrrev_b32 v6, 20, v6")
    a("v_mul_u32_u24 v5, 56, v6")
    a("v_sub_u32 v5, v4, v5")
    a("v_lshrrev_b32 v7, 1, v6")
    a("v_and_b32 v8, 1, v6")
    a("v_lshlrev_b32 v9, 4, v7")
    a("v_lshl_add_u32 v9, v8, 2, v9")
    a("v_mul_u32_u24 v9, 896, v9")
    a("v_lshl_add_u32 v9, v5, 4, v9")
    for j in range(8):
        a("s_mov_b32 s%d, %d" % (40 + j, (8 * (j >> 2) + (j & 3)) * 896))
    for j in range(8):
        a("buffer_load_dwordx4 v[%d:%d], v9, s[16:19], s%d offen" % (16 + 4*j, 19 + 4*j, 40 + j))
    a("v_lshrrev_b32 v10, 2, v5")
    a("v_mul_u32_u24 v10, 112, v10")
    a("v_add_u32 v10, v10, v7")
    a("v_lshlrev_b32 v10, 6, v10")
    a("v_lshl_add_u32 v10, v8, 5, v10")
    a("v_and_b32 v11, 1, v5")
    a("v_lshl_add_u32 v10, v11, 4, v10")
    a("v_bfe_u32 v11, v5, 1, 1")
    a("v_lshl_add_u32 v10, v11, 2, v10")
    a("v_lshlrev_b32 v12, 4, v10")
    a("s_mov_b32 s36, 0x%x" % WS_WDP)
    a("s_waitcnt vmcnt(0)")
    for cc in range(8):
        sel = "s30" if cc % 2 == 0 else "s31"
        for jj in range(4):
            a("v_perm_b32 v%d, v%d, v%d, %s" % (48 + 4*cc + jj, 16 + 4*(2*jj+1) + (cc >> 1), 16 + 4*(2*jj) + (cc >> 1), sel))
    for cc in range(8):
        a("buffer_store_dwordx4 v[%d:%d], v12, s[24:27], s36 offen offset:%d" % (48 + 4*cc, 51 + 4*cc, (cc >> 2) * 128 + (cc & 3) * 16))
    a("s_branch K0_done")
    a.label("K0_wo")
    a("s_sub_u32 s33, s2, 161")
    a("s_lshl_b32 s33, s33, 8")
    a("v_add_u32 v4, s33, v0")
    a("v_and_b32 v5, 31, v4")
    a("v_lshrrev_b32 v6, 5, v4")
    a("v_lshrrev_b32 v7, 1, v6")
    a("v_and_b32 v8, 1, v6")
    a("v_lshrrev_b32 v9, 1, v7")
    a("v_and_b32 v10, 1, v7")
    a("v_cmp_eq_u32 s[40:41], 0, v10")
    a("v_mul_u32_u24 v11, 28, v5")
    a("v_mul_u32_u24 v12, 28, v9")
    a("v_lshlrev_b32 v13, 2, v8")
    a("v_lshlrev_b32 v14, 1, v8")
    a("v_mov_b32 v15, 0x7000000")
    a("s_movk_i32 s38, 896")
    for j in range(8):
        a("v_add_u32 v88, %d, v13" % (8 * (j >> 2) + (j & 3)))
        if j < 4:
            a("v_add_u32 v89, %d, v13" % (16 + j))
        elif j < 6:
            a("v_add_u32 v89, %d, v14" % (24 + j - 4))
        if j < 6:
            a("v_cndmask_b32 v88, v89, v88, s[40:41]")
            a("v_add_u32 v88, v88, v12")
            a("v_mad_u32_u24 v88, v88, s38, v11")
        else:
            a("v_add_u32 v88, v88, v12")
            a("v_mad_u32_u24 v88, v88, s38, v11")
            a("v_cndmask_b32 v88, v15, v88, s[40:41]")
        a("buffer_load_dwordx4 v[%d:%d], v88, s[20:23], 0 offen" % (16 + 8*j, 19 + 8*j))
        a("buffer_load_dwordx3 v[%d:%d], v88, s[20:23], 0 offen offset:16" % (20 + 8*j, 22 + 8*j))
    a("v_lshrrev_b32 v10, 1, v5")
    a("v_lshl_add_u32 v10, v10, 5, v7")
    a("v_lshlrev_b32 v10, 6, v10")
    a("v_lshl_add_u32 v10, v8, 5, v10")
    a("v_and_b32 v11, 1, v5")
    a("v_lshl_add_u32 v10, v11, 2, v10")
    a("v_lshlrev_b32 v12, 4, v10")
    a("s_mov_b32 s36, 0x%x" % WS_WOP)
    a("s_waitcnt vmcnt(0)")
    for rp in range(16):
        ob = 96 + 4 * rp
        if rp < 14:
            sel = "s30" if rp % 2 == 0 else "s31"
            for jj in range(4):
                a("v_perm_b32 v%d, v%d, v%d, %s" % (ob + jj, 16 + 8*(2*jj+1) + (rp >> 1), 16 + 8*(2*jj) + (rp >> 1), sel))
        else:
            for jj in range(4): a("v_mov_b32 v%d, 0" % (ob + jj))
    for rp in range(16):
        ob = 96 + 4 * rp
        a("buffer_store_dwordx4 v[%d:%d], v12, s[24:27], s36 offen offset:%d" % (ob, ob + 3, (rp >> 2) * 128 + (rp & 3) * 16))
    a.label("K0_done")
    a("s_endpgm")
    return kernel_desc(name, 160, 48), "; @launch kernel=%s grid=(169,1,1) block=(256,1,1) lds=1024" % name
```

```python
from gen_common import *

XBASE = 86016
MISC = 151552
K1_LDS = 154112
LOG2E = 1.4426950408889634

def softmax_pm(a, P, T, OUTP, OUTN, sL):
    mx, mn, t1, t2, sp, sn = T, T + 1, T + 2, T + 3, T + 4, T + 5
    EP = T + 6; EN = T + 20
    a("v_max3_f32 v%d, v%d, v%d, v%d" % (mx, P, P + 1, P + 2))
    a("v_min3_f32 v%d, v%d, v%d, v%d" % (mn, P, P + 1, P + 2))
    for r in range(3, 13, 2):
        a("v_max3_f32 v%d, v%d, v%d, v%d" % (mx, mx, P + r, P + r + 1))
        a("v_min3_f32 v%d, v%d, v%d, v%d" % (mn, mn, P + r, P + r + 1))
    a("v_max_f32 v%d, v%d, v%d" % (mx, mx, P + 13))
    a("v_min_f32 v%d, v%d, v%d" % (mn, mn, P + 13))
    a("v_mov_b32 v%d, v%d" % (t1, mx))
    a("v_mov_b32 v%d, v%d" % (t2, mn))
    a("v_permlane32_swap_b32 v%d, v%d" % (mx, t1))
    a("v_permlane32_swap_b32 v%d, v%d" % (mn, t2))
    a("v_max_f32 v%d, v%d, v%d" % (mx, mx, t1))
    a("v_min_f32 v%d, v%d, v%d" % (mn, mn, t2))
    a("v_mul_f32 v%d, %s, v%d" % (mx, sL, mx))
    a("v_mul_f32 v%d, %s, v%d" % (mn, sL, mn))
    for r in range(14):
        a("v_fma_f32 v%d, v%d, %s, -v%d" % (EP + r, P + r, sL, mx))
        a("v_fma_f32 v%d, -v%d, %s, v%d" % (EN + r, P + r, sL, mn))
    for r in range(14):
        a("v_exp_f32 v%d, v%d" % (EP + r, EP + r))
        a("v_exp_f32 v%d, v%d" % (EN + r, EN + r))
    a("v_add_f32 v%d, v%d, v%d" % (sp, EP, EP + 1))
    a("v_add_f32 v%d, v%d, v%d" % (sn, EN, EN + 1))
    for r in range(2, 14):
        a("v_add_f32 v%d, v%d, v%d" % (sp, sp, EP + r))
        a("v_add_f32 v%d, v%d, v%d" % (sn, sn, EN + r))
    a("v_mov_b32 v%d, v%d" % (t1, sp))
    a("v_mov_b32 v%d, v%d" % (t2, sn))
    a("v_permlane32_swap_b32 v%d, v%d" % (sp, t1))
    a("v_permlane32_swap_b32 v%d, v%d" % (sn, t2))
    a("v_add_f32 v%d, v%d, v%d" % (sp, sp, t1))
    a("v_add_f32 v%d, v%d, v%d" % (sn, sn, t2))
    a("v_rcp_f32 v%d, v%d" % (sp, sp))
    a("v_rcp_f32 v%d, v%d" % (sn, sn))
    for r in range(14):
        a("v_mul_f32 v%d, v%d, v%d" % (EP + r, EP + r, sp))
        a("v_mul_f32 v%d, v%d, v%d" % (EN + r, EN + r, sn))
    for d in range(7):
        a("v_cvt_pk_bf16_f32 v%d, v%d, v%d" % (OUTP + d, EP + 2*d, EP + 2*d + 1))
        a("v_cvt_pk_bf16_f32 v%d, v%d, v%d" % (OUTN + d, EN + 2*d, EN + 2*d + 1))
    a("v_mov_b32 v%d, 0" % (OUTP + 7))
    a("v_mov_b32 v%d, 0" % (OUTN + 7))

def gen_k1(a, name="k1_kernel"):
    kernel_head(a, name)
    a("s_cmp_ge_u32 s2, 256")
    a("s_cbranch_scc1 K1_done")
    load_srds(a, [("x", 8), ("wqkv", 12), ("wphi", 16), ("ws", 24)])
    a("v_lshrrev_b32 v1, 6, v0")
    a("v_readfirstlane_b32 s3, v1")
    a("v_and_b32 v1, 63, v0")
    a("s_and_b32 s30, s2, 7")
    a("s_lshr_b32 s31, s2, 3")
    a("s_lshr_b32 s4, s30, 1")
    a("s_lshl_b32 s4, s4, 2")
    a("s_and_b32 s32, s31, 3")
    a("s_add_u32 s4, s4, s32")
    a("s_and_b32 s5, s30, 1")
    a("s_lshl_b32 s5, s5, 3")
    a("s_lshr_b32 s32, s31, 2")
    a("s_add_u32 s5, s5, s32")
    a("s_and_b32 s6, s3, 3")
    a("s_lshr_b32 s7, s3, 2")
    a("v_lshlrev_b32 v15, 2, v0")
    a("v_add_u32 v15, %d, v15" % MISC)
    a("v_mov_b32 v16, 0")
    a("v_cmp_gt_u32 vcc, 96, v0")
    a("s_and_saveexec_b64 s[34:35], vcc")
    a("ds_write_b32 v15, v16")
    a("s_mov_b64 exec, s[34:35]")
    a("v_lshrrev_b32 v15, 3, v1")
    a("v_and_b32 v16, 7, v1")
    a("v_lshrrev_b32 v17, 1, v15")
    a("s_lshl_b32 s32, s4, 7")
    a("s_lshl_b32 s33, s3, 4")
    a("s_add_u32 s32, s32, s33")
    a("v_add_u32 v18, s32, v15")
    a("v_mul_u32_u24 v18, 896, v18")
    a("v_xor_b32 v19, v16, v17")
    a("v_lshl_add_u32 v2, v19, 4, v18")
    a("v_xor_b32 v19, 4, v19")
    a("v_lshl_add_u32 v3, v19, 4, v18")
    a("v_add_u32 v3, %d, v3" % (8 * 896))
    a("v_lshrrev_b32 v15, 2, v1")
    a("s_lshl_b32 s32, s6, 4")
    a("v_add_u32 v15, s32, v15")
    a("v_mul_u32_u24 v15, 2688, v15")
    a("v_and_b32 v16, 3, v1")
    a("v_lshl_add_u32 v4, v16, 4, v15")
    a("s_mul_i32 s32, s5, 56")
    a("v_add_u32 v4, s32, v4")
    a("v_and_b32 v15, 31, v1")
    a("v_lshrrev_b32 v16, 5, v1")
    a("v_lshrrev_b32 v17, 3, v15")
    a("s_lshl_b32 s32, s6, 2")
    a("v_add_u32 v17, s32, v17")
    a("v_lshlrev_b32 v17, 10, v17")
    a("v_and_b32 v18, 7, v15")
    a("v_lshl_add_u32 v17, v18, 7, v17")
    a("v_add_u32 v17, %d, v17" % XBASE)
    a("v_bfe_u32 v18, v15, 1, 3")
    a("s_lshl_b32 s32, s7, 1")
    a("v_add_u32 v19, s32, v16")
    a("v_xor_b32 v5, v19, v18")
    a("v_lshl_add_u32 v5, v5, 4, v17")
    a("v_add_u32 v19, 4, v19")
    a("v_xor_b32 v6, v19, v18")
    a("v_lshl_add_u32 v6, v6, 4, v17")
    a("v_bfe_u32 v15, v1, 4, 1")
    a("v_bfe_u32 v17, v1, 2, 2")
    a("v_and_b32 v18, 3, v1")
    a("v_lshl_add_u32 v7, v16, 3, v17")
    a("v_lshlrev_b32 v7, 6, v7")
    a("v_lshl_add_u32 v7, v15, 5, v7")
    a("v_lshl_add_u32 v7, v18, 3, v7")
    a("v_add_u32 v8, 57344, v7")
    a("v_mov_b32 v9, 0x3f803f80")
    for r in (10, 11, 12, 13, 14): a("v_mov_b32 v%d, 0" % r)
    a("v_bfe_u32 v15, v1, 3, 2")
    a("v_bfe_u32 v17, v1, 2, 1")
    a("v_lshl_add_u32 v15, v15, 2, v18")
    a("v_mad_u32_u24 v17, v17, 14, v15")
    a("v_lshlrev_b32 v17, 1, v17")
    a("v_mad_u32_u24 v17, v16, %d, v17" % 64)
    a("v_mul_u32_u24 v19, 160, v16")
    a("v_add_u32 v17, v17, v19")
    a("s_mul_i32 s32, s5, 1568")
    a("v_add_u32 v17, s32, v17")
    a("v_mov_b32 v19, 0x7000000")
    a("v_cmp_gt_u32 vcc, 14, v15")
    a("v_cndmask_b32 v28, v19, v17, vcc")
    a("v_cmp_eq_u32 vcc, 0, v16")
    a("v_cndmask_b32 v29, v19, v28, vcc")
    a("s_mov_b32 s36, 0x%08x" % 0x3fb8aa3b)
    a("s_lshl_b32 s37, s3, 11")
    a("s_add_u32 s37, s37, %d" % XBASE)
    a("s_lshl_b32 s38, s6, 10")
    a("s_cmp_eq_u32 s7, 0")
    a("s_cbranch_scc0 K1_kh1")
    for kh in range(2):
        if kh == 1:
            a.label("K1_kh1")
            a.reset_hist(); a.vmq = []
        body(a, kh)
    a.label("K1_done")
    a("s_endpgm")
    return kernel_desc(name, 224, 64), "; @launch kernel=%s grid=(256,1,1) block=(512,1,1) lds=%d" % (name, K1_LDS)

def body(a, kh):
    ACC = [96, 112, 128]
    def xdma(p):
        slot = p % 4
        a("s_movk_i32 s40, %d" % (p * 128))
        a("s_add_u32 m0, s37, %d" % (slot * 16384))
        a.vm("buffer_load_dwordx4 v2, s[8:11], s40 offen lds", "x%d" % p)
        a("s_add_u32 m0, s37, %d" % (slot * 16384 + 1024))
        a.vm("buffer_load_dwordx4 v3, s[8:11], s40 offen lds", "x%d" % p)
    def wdma(p):
        for m in ((0, 1) if kh == 0 else (2,)):
            a("s_mov_b32 s41, %d" % (p * 64 * 2688 + m * 896))
            a("s_add_u32 m0, s38, %d" % (m * 28672 + p * 4096))
            a.vm("buffer_load_dwordx4 v4, s[12:15], s41 offen lds", "w%d" % p)
    def reads(p):
        b = p & 1
        for u in range(2):
            s = 4 * p + kh + 2 * u
            base = 32 + b * 32 + u * 16
            a("ds_read_b128 v[%d:%d], v%d offset:%d" % (base, base + 3, 5 + u, (p % 4) * 16384))
            for m in range(3):
                ar = 8 if m == 2 else 7
                off = (0 if m == 2 else m * 28672) + s * 1024
                a("ds_read_b64_tr_b16 v[%d:%d], v%d offset:%d" % (base + 4 + 4*m, base + 5 + 4*m, ar, off))
                a("ds_read_b64_tr_b16 v[%d:%d], v%d offset:%d" % (base + 6 + 4*m, base + 7 + 4*m, ar, off + 256))
    def compute(p):
        b = p & 1
        for u in range(2):
            s = 4 * p + kh + 2 * u
            base = 32 + b * 32 + u * 16
            first = (p == 0 and u == 0)
            for m in range(3):
                c = "0" if first else "v[%d:%d]" % (ACC[m], ACC[m] + 15)
                a("v_mfma_f32_32x32x16_bf16 v[%d:%d], v[%d:%d], v[%d:%d], %s" % (ACC[m], ACC[m] + 15, base + 4 + 4*m, base + 7 + 4*m, base, base + 3, c))
                if m < 2:
                    for d in range(2 * m, 2 * m + 2):
                        a("v_dot2_f32_bf16 v10, v%d, v9, v10" % (base + d))
                        a("v_dot2_f32_bf16 v11, v%d, v%d, v11" % (base + d, base + d))
            lab = "K1_cs_%d_%d" % (kh, s)
            a("s_cmp_eq_u32 s6, %d" % ((s >> 1) & 3))
            a("s_cbranch_scc0 %s" % lab)
            a.skip_begin()
            for d in range(4):
                for m in range(3):
                    a("v_dot2_f32_bf16 v%d, v%d, v9, v%d" % (12 + m, base + 4 + 4*m + d, 12 + m))
            a.skip_end(lab)
    for p in range(4):
        xdma(p); wdma(p)
    for p in range(4, 7): wdma(p)
    for sp in range(2):
        for j in range(8):
            reg = (20 if j % 2 == 0 else 208) + 4 * sp + (j >> 1)
            ar = 29 if (sp == 1 and j >= 4) else 28
            off = (16 * sp + 8 * (j >> 2) + (j & 3)) * 56
            a.vm("buffer_load_ushort v%d, v%d, s[16:19], 0 offen offset:%d" % (reg, ar, off), "phi")
    a.vm_wait(["x0", "w0"], "lgkmcnt(0)")
    a("s_barrier")
    reads(0)
    for p in range(7):
        if p < 6:
            a.vm_wait(["x%d" % (p + 1), "w%d" % (p + 1)], "lgkmcnt(0)")
            a("s_barrier")
            if p + 4 <= 6: xdma(p + 4)
            reads(p + 1)
        else:
            a("s_waitcnt lgkmcnt(0)")
        compute(p)
    a("v_mov_b32 v15, v10")
    a("v_mov_b32 v16, v11")
    a("v_permlane32_swap_b32 v10, v15")
    a("v_permlane32_swap_b32 v11, v16")
    a("v_add_f32 v10, v10, v15")
    a("v_add_f32 v11, v11, v16")
    a("v_and_b32 v15, 31, v1")
    a("s_lshl_b32 s32, s6, 5")
    a("v_add_u32 v16, s32, v15")
    a("v_lshlrev_b32 v17, 3, v16")
    a("v_add_u32 v17, %d, v17" % (MISC + 512))
    a("ds_write_b64 v17, v[10:11] offset:%d" % (kh * 1024))
    a("v_lshlrev_b32 v18, 2, v15")
    a("v_add_u32 v18, %d, v18" % MISC)
    for m in range(3):
        a("ds_add_f32 v18, v%d offset:%d" % (12 + m, m * 128))
    a("s_mul_i32 s32, s6, 6144")
    a("v_lshlrev_b32 v19, 4, v1")
    a("v_add_u32 v19, s32, v19")
    send = ([ACC[1] + 4*q for q in range(4)] + [ACC[2] + 8, ACC[2] + 12]) if kh == 0 else ([ACC[0] + 4*q for q in range(4)] + [ACC[2], ACC[2] + 4])
    for i, r in enumerate(send):
        a("ds_write_b128 v19, v[%d:%d] offset:%d" % (r, r + 3, kh * 28672 + i * 1024))
    a("s_waitcnt lgkmcnt(0)")
    a("s_barrier")
    RX = 144
    for i in range(6):
        a("ds_read_b128 v[%d:%d], v19 offset:%d" % (RX + 4*i, RX + 4*i + 3, (1 - kh) * 28672 + i * 1024))
    a("ds_read_b64 v[12:13], v17 offset:%d" % ((1 - kh) * 1024))
    CS = 168
    a("v_lshrrev_b32 v18, 5, v1")
    a("v_lshlrev_b32 v18, 4, v18")
    a("v_add_u32 v18, %d, v18" % MISC)
    mm = kh
    for q in range(4):
        a("ds_read_b128 v[%d:%d], v18 offset:%d" % (CS + 4*q, CS + 4*q + 3, mm * 128 + q * 32))
    for q in range(2):
        a("ds_read_b128 v[%d:%d], v18 offset:%d" % (CS + 16 + 4*q, CS + 16 + 4*q + 3, 2 * 128 + (2 * kh + q) * 32))
    a("s_waitcnt lgkmcnt(0)")
    a("v_add_f32 v10, v10, v12")
    a("v_add_f32 v11, v11, v13")
    a("v_mul_f32 v10, 0x%08x, v10" % np.float32(1.0 / 448).view(np.uint32))
    a("v_mul_f32 v11, 0x%08x, v11" % np.float32(1.0 / 448).view(np.uint32))
    a("v_fma_f32 v11, -v10, v10, v11")
    a("v_max_f32 v11, 0, v11")
    a("v_add_f32 v11, 0x%08x, v11" % np.float32(1e-5).view(np.uint32))
    a("v_rsq_f32 v11, v11")
    own = [ACC[mm] + r for r in range(16)] + [ACC[2] + 8 * kh + r for r in range(8)]
    for i, r in enumerate(own):
        a("v_add_f32 v%d, v%d, v%d" % (r, r, RX + i))
        a("v_fma_f32 v%d, -v10, v%d, v%d" % (r, CS + i, r))
        a("v_mul_f32 v%d, v%d, v11" % (r, r))
    import os
    if os.environ.get("K1DBG"):
        a("s_lshl_b32 s32, s2, 3")
        a("s_add_u32 s32, s32, s3")
        a("s_lshl_b32 s32, s32, 12")
        a("s_add_u32 s32, s32, 0x%x" % WS_HH)
        a("v_lshlrev_b32 v18, 4, v1")
        for q in range(4):
            a("buffer_store_dwordx4 v[%d:%d], v18, s[24:27], s32 offen offset:%d" % (ACC[mm] + 4*q, ACC[mm] + 4*q + 3, q * 1024))
        a.vmq += ["dbg"] * 4
    for d in range(8):
        a("v_cvt_pk_bf16_f32 v%d, v%d, v%d" % (32 + d, ACC[mm] + 2*d, ACC[mm] + 2*d + 1))
    a.vm_wait("phi")
    for d in range(8):
        a("v_lshl_or_b32 v%d, v%d, 16, v%d" % (20 + d, 208 + d, 20 + d))
    PQ = 144
    a("v_mfma_f32_32x32x16_bf16 v[%d:%d], v[20:23], v[32:35], 0" % (PQ, PQ + 15))
    a("v_mfma_f32_32x32x16_bf16 v[%d:%d], v[24:27], v[36:39], v[%d:%d]" % (PQ, PQ + 15, PQ, PQ + 15))
    a("v_mul_u32_u24 v19, 192, v16")
    a("v_lshrrev_b32 v18, 5, v1")
    a("v_add_u32 v19, %d, v19" % XBASE)
    a("v_lshl_add_u32 v17, v18, 3, v19")
    a("v_lshl_add_u32 v19, v18, 5, v19")
    VB = ACC[2] + 8 * kh
    for d in range(4):
        a("v_cvt_pk_bf16_f32 v%d, v%d, v%d" % (40 + d, VB + 2*d, VB + 2*d + 1))
    if kh == 0:
        a("ds_write_b64 v17, v[40:41] offset:128")
        a("ds_write_b64 v17, v[42:43] offset:144")
    else:
        a("ds_write_b64 v17, v[40:41] offset:160")
        a("v_permlane32_swap_b32 v42, v43")
        a("v_mov_b32 v43, 0x3f80")
        a("ds_write_b64 v17, v[42:43] offset:176")
    softmax_pm(a, PQ, 168, 48, 56, "s36")
    if kh == 0:
        a("s_lshl_b32 s32, s4, 2")
        a("s_add_u32 s32, s32, s6")
        a("s_lshl_b32 s32, s32, 4")
        a("s_add_u32 s32, s32, s5")
        a("s_lshl_b32 s32, s32, 12")
        if WS_PHIQ: a("s_add_u32 s32, s32, 0x%x" % WS_PHIQ)
        a("v_lshlrev_b32 v18, 4, v1")
        for ks in range(4):
            a("buffer_store_dwordx4 v[%d:%d], v18, s[24:27], s32 offen offset:%d" % (48 + 4*ks, 51 + 4*ks, ks * 1024))
    else:
        a("ds_write_b128 v19, v[48:51]")
        a("ds_write_b128 v19, v[52:55] offset:16")
        a("ds_write_b128 v19, v[56:59] offset:64")
        a("ds_write_b128 v19, v[60:63] offset:80")
    a("s_waitcnt lgkmcnt(0)")
    a("s_barrier")
    if kh == 1:
        a("s_branch K1_done")
        return
    a("s_cmp_ge_u32 s6, 2")
    a("s_cbranch_scc1 K1_done")
    a("v_lshrrev_b32 v15, 5, v1")
    a("v_bfe_u32 v16, v1, 2, 2")
    a("v_lshl_add_u32 v15, v15, 3, v16")
    a("v_mul_u32_u24 v15, 192, v15")
    a("v_add_u32 v15, %d, v15" % XBASE)
    a("v_bfe_u32 v16, v1, 4, 1")
    a("v_and_b32 v17, 3, v1")
    a("v_lshrrev_b32 v18, 1, v17")
    a("v_lshl_add_u32 v18, v16, 1, v18")
    a("v_and_b32 v19, 1, v17")
    a("v_lshl_add_u32 v18, v19, 2, v18")
    a("v_lshl_add_u32 v2, v18, 3, v15")
    a("s_lshl_b32 s32, s6, 6")
    a("v_add_u32 v2, s32, v2")
    a("v_lshl_add_u32 v3, v16, 5, v15")
    a("v_lshl_add_u32 v3, v17, 3, v3")
    for ks in range(8):
        b = 32 + 8 * ks
        a("ds_read_b64_tr_b16 v[%d:%d], v2 offset:%d" % (b, b + 1, ks * 3072))
        a("ds_read_b64_tr_b16 v[%d:%d], v2 offset:%d" % (b + 2, b + 3, ks * 3072 + 768))
        a("ds_read_b64_tr_b16 v[%d:%d], v3 offset:%d" % (b + 4, b + 5, ks * 3072 + 128))
        a("ds_read_b64_tr_b16 v[%d:%d], v3 offset:%d" % (b + 6, b + 7, ks * 3072 + 768 + 128))
    for ks in range(8):
        b = 32 + 8 * ks
        a("s_waitcnt lgkmcnt(%d)" % min(15, 4 * (7 - ks)))
        a("v_mfma_f32_32x32x16_bf16 v[96:111], v[%d:%d], v[%d:%d], %s" % (b, b + 3, b + 4, b + 7, "0" if ks == 0 else "v[96:111]"))
    a("s_lshl_b32 s32, s5, 4")
    a("s_add_u32 s32, s32, s4")
    a("s_lshl_b32 s32, s32, 1")
    a("s_add_u32 s32, s32, s6")
    a("s_lshl_b32 s32, s32, 12")
    a("s_add_u32 s32, s32, 0x%x" % WS_KVP)
    a("v_lshlrev_b32 v18, 4, v1")
    for q in range(4):
        a("buffer_store_dwordx4 v[%d:%d], v18, s[24:27], s32 offen offset:%d" % (96 + 4*q, 99 + 4*q, q * 1024))
    a("s_branch K1_done")

def gen_k1b(a, name="k1b_kernel"):
    kernel_head(a, name)
    a("s_cmp_ge_u32 s2, 16")
    a("s_cbranch_scc1 K1B_done")
    load_srds(a, [("ws", 24)])
    a("v_and_b32 v1, 63, v0")
    a("v_lshrrev_b32 v2, 6, v0")
    a("v_lshlrev_b32 v3, 11, v2")
    a("v_lshl_add_u32 v3, v1, 4, v3")
    a("s_lshl_b32 s4, s2, 17")
    a("s_add_u32 s4, s4, 0x%x" % WS_KVP)
    for rb in range(16):
        a("buffer_load_dwordx4 v[%d:%d], v3, s[24:27], s4 offen" % (8 + 8*rb, 11 + 8*rb))
        a("buffer_load_dwordx4 v[%d:%d], v3, s[24:27], s4 offen offset:1024" % (12 + 8*rb, 15 + 8*rb))
        a("s_add_u32 s4, s4, 8192")
    for rb in range(1, 16):
        a("s_waitcnt vmcnt(%d)" % (2 * (15 - rb)))
        for i in range(8):
            a("v_add_f32 v%d, v%d, v%d" % (8 + i, 8 + i, 8 + 8*rb + i))
    for d in range(4):
        a("v_cvt_pk_bf16_f32 v%d, v%d, v%d" % (4 + d, 8 + 2*d, 9 + 2*d))
    a("v_lshlrev_b32 v3, 4, v0")
    a("s_lshl_b32 s4, s2, 12")
    a("s_add_u32 s4, s4, 0x%x" % WS_KVA)
    a("buffer_store_dwordx4 v[4:7], v3, s[24:27], s4 offen")
    a.label("K1B_done")
    a("s_endpgm")
    return kernel_desc(name, 144, 32), "; @launch kernel=%s grid=(16,1,1) block=(256,1,1) lds=0" % name
```

```python
from gen_common import *

def gen_k2(a, name="k2_kernel"):
    kernel_head(a, name)
    a("s_cmp_ge_u32 s2, 256")
    a("s_cbranch_scc1 K2_done")
    load_srds(a, [("x", 8), ("ws", 24)])
    a("v_lshrrev_b32 v1, 6, v0")
    a("v_readfirstlane_b32 s3, v1")
    a("v_and_b32 v1, 63, v0")
    a("s_and_b32 s30, s2, 7")
    a("s_lshr_b32 s31, s2, 3")
    a("s_lshl_b32 s4, s30, 3")
    a("s_lshr_b32 s32, s31, 2")
    a("s_add_u32 s4, s4, s32")
    a("s_and_b32 s5, s31, 3")
    a("s_lshl_b32 s6, s5, 2")
    a("s_add_u32 s6, s6, s3")
    a("v_lshlrev_b32 v2, 4, v1")
    PH, KV, OA, XR = 16, 80, 144, 208
    a("s_lshl_b32 s32, s4, 4")
    a("s_lshl_b32 s33, s3, 2")
    a("s_add_u32 s32, s32, s33")
    a("s_lshl_b32 s32, s32, 12")
    if WS_PHIQ: a("s_add_u32 s32, s32, 0x%x" % WS_PHIQ)
    a("s_lshl_b32 s33, s3, 14")
    a("s_add_u32 s33, s33, 0x%x" % WS_KVA)
    for hh in range(4):
        for ks in range(4):
            a.vm("buffer_load_dwordx4 v[%d:%d], v2, s[24:27], s32 offen offset:%d" % (PH + (hh*4+ks)*4, PH + (hh*4+ks)*4 + 3, ks * 1024), "p%d" % hh)
            a.vm("buffer_load_dwordx4 v[%d:%d], v2, s[24:27], s33 offen offset:%d" % (KV + (hh*4+ks)*4, KV + (hh*4+ks)*4 + 3, ks * 1024), "p%d" % hh)
        if hh < 3:
            a("s_add_u32 s32, s32, 4096")
            a("s_add_u32 s33, s33, 4096")
    a("v_and_b32 v3, 31, v1")
    a("s_lshl_b32 s32, s4, 5")
    a("v_add_u32 v3, s32, v3")
    a("v_mul_u32_u24 v3, 896, v3")
    a("v_lshrrev_b32 v4, 5, v1")
    a("v_mad_u32_u24 v3, v4, 28, v3")
    a("s_mul_i32 s34, s6, 56")
    a("v_add_u32 v3, s34, v3")
    a.vm("buffer_load_dwordx4 v[%d:%d], v3, s[8:11], 0 offen" % (XR, XR + 3), "x")
    a.vm("buffer_load_dwordx3 v[%d:%d], v3, s[8:11], 0 offen offset:16" % (XR + 4, XR + 6), "x")
    a("s_lshl_b32 s32, s6, 15")
    a("s_add_u32 s32, s32, 0x%x" % WS_WOP)
    for ks in range(32):
        a.vm("buffer_load_dwordx4 a[%d:%d], v2, s[24:27], s32 offen offset:%d" % (4*ks, 4*ks + 3, (ks & 3) * 1024), "w%d" % ks)
        if ks & 3 == 3 and ks < 31: a("s_add_u32 s32, s32, 4096")
    a("s_lshl_b32 s32, s3, 13")
    a("v_add_u32 v5, s32, v2")
    for hh in range(4):
        a.vm_wait("p%d" % hh)
        acc = OA + 16 * hh
        for ks in range(4):
            a("v_mfma_f32_32x32x16_bf16 v[%d:%d], v[%d:%d], v[%d:%d], %s" % (acc, acc + 15, KV + (hh*4+ks)*4, KV + (hh*4+ks)*4 + 3, PH + (hh*4+ks)*4, PH + (hh*4+ks)*4 + 3, "0" if ks == 0 else "v[%d:%d]" % (acc, acc + 15)))
    for hh in range(4):
        acc = OA + 16 * hh
        a("v_add_f32 v6, 0x%08x, v%d" % (np.float32(1e-6).view(np.uint32), acc + 14))
        a("v_rcp_f32 v6, v6")
        for r in range(14):
            a("v_mul_f32 v%d, v%d, v6" % (acc + r, acc + r))
        for d in range(7):
            a("v_cvt_pk_bf16_f32 v%d, v%d, v%d" % (216 + 8*(hh & 1) + d, acc + 2*d, acc + 2*d + 1))
        a("v_mov_b32 v%d, 0" % (216 + 8*(hh & 1) + 7))
        a("ds_write_b128 v5, v[%d:%d] offset:%d" % (216 + 8*(hh & 1), 219 + 8*(hh & 1), hh * 2048))
        a("ds_write_b128 v5, v[%d:%d] offset:%d" % (220 + 8*(hh & 1), 223 + 8*(hh & 1), hh * 2048 + 1024))
    a("s_waitcnt lgkmcnt(0)")
    a("s_barrier")
    for ks in range(32):
        a("ds_read_b128 v[%d:%d], v2 offset:%d" % (16 + 4*ks, 19 + 4*ks, ks * 1024))
    for ks in range(32):
        a.vm_wait("w%d" % ks, "lgkmcnt(%d)" % min(15, 31 - ks))
        a("v_mfma_f32_32x32x16_bf16 v[144:159], a[%d:%d], v[%d:%d], %s" % (4*ks, 4*ks + 3, 16 + 4*ks, 19 + 4*ks, "0" if ks == 0 else "v[144:159]"))
    a.vm_wait("x")
    for d in range(7):
        a("v_lshlrev_b32 v6, 16, v%d" % (XR + d))
        a("v_and_b32 v7, 0xffff0000, v%d" % (XR + d))
        a("v_add_f32 v6, v6, v%d" % (144 + 2*d))
        a("v_add_f32 v7, v7, v%d" % (145 + 2*d))
        a("v_cvt_pk_bf16_f32 v%d, v6, v7" % (216 + d))
    a("s_mov_b32 s32, 0x%x" % WS_HR)
    a("buffer_store_dwordx4 v[216:219], v3, s[24:27], s32 offen")
    a("buffer_store_dwordx3 v[220:222], v3, s[24:27], s32 offen offset:16")
    a("s_mul_i32 s33, s4, %d" % (28 * 1024))
    a("s_add_u32 s33, s33, 0x%x" % WS_HF)
    a("s_mul_i32 s34, s6, 14")
    for d in range(7):
        a("s_add_u32 s35, s34, %d" % (2 * d))
        a("s_lshr_b32 s36, s35, 3")
        a("s_lshl_b32 s36, s36, 10")
        a("s_and_b32 s35, s35, 7")
        a("s_lshl_b32 s35, s35, 1")
        a("s_add_u32 s36, s36, s35")
        a("s_add_u32 s36, s36, s33")
        a("buffer_store_dword v%d, v2, s[24:27], s36 offen" % (216 + d))
    a.label("K2_done")
    a("s_endpgm")
    return kernel_desc(name, 256 + 128, 64, 256), "; @launch kernel=%s grid=(256,1,1) block=(256,1,1) lds=32768" % name
```

```python
from gen_common import *

K3_LDS = 5 * 28672 + 1024
CSL = 5 * 28672

def gen_k3(a, name="k3_kernel"):
    kernel_head(a, name)
    a("s_cmp_ge_u32 s2, 256")
    a("s_cbranch_scc1 K3_done")
    load_srds(a, [("ws", 24)])
    a("v_lshrrev_b32 v1, 6, v0")
    a("v_readfirstlane_b32 s3, v1")
    a("v_and_b32 v1, 63, v0")
    a("s_and_b32 s30, s2, 7")
    a("s_lshr_b32 s31, s2, 3")
    a("s_and_b32 s4, s30, 1")
    a("s_lshl_b32 s4, s4, 3")
    a("s_and_b32 s32, s31, 7")
    a("s_add_u32 s4, s4, s32")
    a("s_lshr_b32 s5, s30, 1")
    a("s_lshl_b32 s5, s5, 2")
    a("s_lshr_b32 s32, s31, 3")
    a("s_add_u32 s5, s5, s32")
    a("v_lshlrev_b32 v2, 4, v1")
    a("s_lshl_b32 s6, s4, 2")
    a("s_add_u32 s6, s6, s3")
    a("s_mul_i32 s7, s5, %d" % (7 * 28672))
    a("s_mul_i32 s32, s3, 7168")
    a("s_add_u32 s7, s7, s32")
    a("s_add_u32 s7, s7, 0x%x" % WS_WGU)
    a("s_mov_b32 s8, s32")
    ACT, AW, ACC, CS, T = 16, 128, (160, 176), 192, 208
    NW = 8; P = 6
    def wdma(i):
        slot = i % 5
        for h in range(2):
            a("s_add_u32 s33, s7, %d" % (i * 28672 + h * 4096))
            a("s_add_u32 m0, s8, %d" % (slot * 28672 + h * 4096))
            for q in range(4 if h == 0 else 3):
                a.vm("buffer_load_dwordx4 v2, s[24:27], s33 offen offset:%d lds" % (q * 1024), "t%d" % i)
    wdma(0)
    a("s_mul_i32 s32, s6, %d" % (28 * 1024))
    a("s_add_u32 s32, s32, 0x%x" % WS_HF)
    for s in range(28):
        a.vm("buffer_load_dwordx4 v[%d:%d], v2, s[24:27], s32 offen offset:%d" % (ACT + 4*s, ACT + 4*s + 3, (s & 3) * 1024), "a%d" % s)
        if s & 3 == 3: a("s_add_u32 s32, s32, 4096")
    a("s_mul_i32 s32, s5, 896")
    a("s_add_u32 s32, s32, 0x%x" % WS_CS)
    a("s_mov_b32 m0, %d" % CSL)
    a.vm("buffer_load_dwordx4 v2, s[24:27], s32 offen lds", "t0")
    for i in range(1, 5): wdma(i)
    a("v_mov_b32 v9, 0x3f803f80")
    a("v_mov_b32 v10, 0")
    a("v_mov_b32 v11, 0")
    a("v_lshrrev_b32 v3, 5, v1")
    a("v_lshlrev_b32 v3, 4, v3")
    a("v_add_u32 v3, %d, v3" % CSL)
    a("v_add_u32 v4, 57344, v2")
    a("v_add_u32 v5, 114688, v2")
    a("s_mul_i32 s9, s6, 112")
    a("s_mul_i32 s32, s5, 7")
    a("s_add_u32 s9, s9, s32")
    a("s_lshl_b32 s9, s9, 10")
    a("s_add_u32 s9, s9, 0x%x" % WS_HH)
    def aread(n):
        i, s = divmod(n, 28)
        off = (i % 5) * 28672 + s * 1024
        r = 2;
        if off >= 114688: r = 5; off -= 114688
        elif off >= 57344: r = 4; off -= 57344
        b = AW + 4 * (n % NW)
        a("ds_read_b128 v[%d:%d], v%d offset:%d" % (b, b + 3, r, off))
    def epilogue_ops(i):
        acc = ACC[i & 1]
        ops = []
        for q in range(4):
            ops.append(("lds", "ds_read_b128 v[%d:%d], v3 offset:%d" % (CS + 4*q, CS + 4*q + 3, i * 128 + q * 32)))
        ops.append(("wait_cs", None))
        for r in range(16):
            ops.append(("v", "v_mul_f32 v%d, v%d, v%d" % (CS + r, CS + r, 13 if r < 8 else 15)))
        for r in range(8):
            ops.append(("v", "v_fma_f32 v%d, v%d, v12, v%d" % (T + r, acc + r, CS + r)))
        for r in range(8):
            ops.append(("v", "v_exp_f32 v%d, v%d" % (T + r, T + r)))
            ops.append(("v", "v_fma_f32 v%d, v%d, v14, v%d" % (T + 8 + r, acc + 8 + r, CS + 8 + r)))
        for r in range(8):
            ops.append(("v", "v_add_f32 v%d, 1.0, v%d" % (T + r, T + r)))
        for r in range(8):
            ops.append(("v", "v_rcp_f32 v%d, v%d" % (T + r, T + r)))
        for r in range(8):
            ops.append(("v", "v_mul_f32 v%d, v%d, v%d" % (T + r, T + r, T + 8 + r)))
        for d in range(4):
            ops.append(("v", "v_cvt_pk_bf16_f32 v%d, v%d, v%d" % (T + 16 + d, T + 2*d, T + 2*d + 1)))
        ops.append(("st", "buffer_store_dwordx4 v[%d:%d], v2, s[24:27], s9 offen offset:%d" % (T + 16, T + 19, (i & 3) * 1024)))
        if i == 3: ops.append(("s", "s_add_u32 s9, s9, 4096"))
        return ops
    lq = []
    def lds(text, tag):
        a(text); lq.append(tag)
    def lds_wait(tag):
        nonlocal lq
        if tag not in lq: return
        last = max(i for i, t in enumerate(lq) if t == tag)
        n = len(lq) - 1 - last
        a("s_waitcnt lgkmcnt(%d)" % min(n, 15))
        lq = lq[len(lq) - n:] if n else []
    a.vm_wait("t0")
    a("s_barrier")
    NT = 7 * 28
    _aread = aread
    def aread(n):
        _aread(n); lq.append("f%d" % n)
    for n in range(P): aread(n)
    pend = []
    for n in range(NT):
        i, s = divmod(n, 28)
        if s == 0: assert not pend
        if s == 2 and i > 0: pend = epilogue_ops(i - 1)
        nn = n + P
        if nn < NT:
            if nn % 28 == 0:
                ti = nn // 28
                a.vm_wait("t%d" % ti)
                a("s_barrier")
                if ti + 3 <= 6 and ti + 3 >= 5: wdma(ti + 3)
            aread(nn)
        if i == 0: a.vm_wait("a%d" % s)
        lds_wait("f%d" % n)
        acc = ACC[i & 1]; b = AW + 4 * (n % NW)
        a("v_mfma_f32_32x32x16_bf16 v[%d:%d], v[%d:%d], v[%d:%d], %s" % (acc, acc + 15, b, b + 3, ACT + 4*s, ACT + 4*s + 3, "0" if s == 0 else "v[%d:%d]" % (acc, acc + 15)))
        if i == 0:
            for d in range(4):
                a("v_dot2_f32_bf16 v10, v%d, v9, v10" % (ACT + 4*s + d))
                a("v_dot2_f32_bf16 v11, v%d, v%d, v11" % (ACT + 4*s + d, ACT + 4*s + d))
            if s == 27:
                a("v_mov_b32 v6, v10")
                a("v_mov_b32 v7, v11")
                a("v_permlane32_swap_b32 v10, v6")
                a("v_permlane32_swap_b32 v11, v7")
                a("v_add_f32 v10, v10, v6")
                a("v_add_f32 v11, v11, v7")
                a("v_mul_f32 v10, 0x%08x, v10" % np.float32(1.0 / 448).view(np.uint32))
                a("v_mul_f32 v11, 0x%08x, v11" % np.float32(1.0 / 448).view(np.uint32))
                a("v_fma_f32 v11, -v10, v10, v11")
                a("v_max_f32 v11, 0, v11")
                a("v_add_f32 v11, 0x%08x, v11" % np.float32(1e-5).view(np.uint32))
                a("v_rsq_f32 v14, v11")
                a("v_mul_f32 v15, v10, v14")
                a("v_sub_f32 v15, 0, v15")
                a("v_mul_f32 v12, 0x%08x, v14" % np.float32(-1.4426950408889634).view(np.uint32))
                a("v_mul_f32 v13, 0x%08x, v15" % np.float32(-1.4426950408889634).view(np.uint32))
        k = 0
        while pend and k < 3:
            kind, txt = pend.pop(0)
            if kind == "lds": lds(txt, "cs")
            elif kind == "wait_cs": lds_wait("cs"); continue
            elif kind == "st": a.vm(txt, "st")
            else: a(txt)
            k += 1
    assert not pend
    for kind, txt in epilogue_ops(6):
        if kind == "lds": lds(txt, "cs")
        elif kind == "wait_cs": lds_wait("cs")
        elif kind == "st": a.vm(txt, "st")
        else: a(txt)
    a.label("K3_done")
    a("s_endpgm")
    return kernel_desc(name, 232, 64), "; @launch kernel=%s grid=(256,1,1) block=(256,1,1) lds=%d" % (name, K3_LDS)
```

```python
from gen_common import *

def gen_k4(a, name="k4_kernel"):
    kernel_head(a, name)
    a("s_cmp_ge_u32 s2, 224")
    a("s_cbranch_scc1 K4_done")
    load_srds(a, [("out", 8), ("ws", 24)])
    a("v_lshrrev_b32 v1, 6, v0")
    a("v_readfirstlane_b32 s3, v1")
    a("v_and_b32 v1, 63, v0")
    a("s_and_b32 s30, s2, 7")
    a("s_lshr_b32 s31, s2, 3")
    a("s_mul_i32 s32, s31, 37")
    a("s_lshr_b32 s32, s32, 8")
    a("s_mul_i32 s33, s32, 7")
    a("s_sub_u32 s5, s31, s33")
    a("s_lshl_b32 s4, s30, 2")
    a("s_add_u32 s4, s4, s32")
    a("v_lshlrev_b32 v2, 4, v1")
    a("s_mul_i32 s32, s3, %d" % (28 * 1024))
    a("s_mul_i32 s12, s4, %d" % (224 * 1024))
    a("s_add_u32 s12, s12, s32")
    a("s_add_u32 s12, s12, 0x%x" % WS_HH)
    a("s_add_u32 s13, s12, %d" % (112 * 1024))
    a("s_mul_i32 s14, s5, %d" % (224 * 1024))
    a("s_add_u32 s14, s14, s32")
    a("s_add_u32 s14, s14, 0x%x" % WS_WDP)
    a("s_add_u32 s15, s14, %d" % (112 * 1024))
    a("s_lshr_b32 s32, s3, 1")
    a("s_lshl_b32 s33, s4, 1")
    a("s_add_u32 s32, s32, s33")
    a("s_lshl_b32 s32, s32, 5")
    a("v_and_b32 v3, 31, v1")
    a("v_add_u32 v3, s32, v3")
    a("v_mul_u32_u24 v3, 896, v3")
    a("v_lshrrev_b32 v4, 5, v1")
    a("v_lshl_add_u32 v3, v4, 5, v3")
    a("s_and_b32 s32, s3, 1")
    a("s_lshl_b32 s33, s5, 1")
    a("s_add_u32 s32, s32, s33")
    a("s_lshl_b32 s32, s32, 6")
    a("v_add_u32 v3, s32, v3")
    a("s_mov_b32 s16, 0x%x" % WS_HR)
    a.vm("buffer_load_dwordx4 v[8:11], v3, s[24:27], s16 offen", "h")
    a.vm("buffer_load_dwordx4 v[12:15], v3, s[24:27], s16 offen offset:16", "h")
    W = 15
    def loads(k):
        b = 16 + 16 * (k % W)
        if k and k % 4 == 0:
            for r in (12, 13, 14, 15): a("s_add_u32 s%d, s%d, 4096" % (r, r))
        for i, sr in enumerate((14, 12, 15, 13)):
            a.vm("buffer_load_dwordx4 v[%d:%d], v2, s[24:27], s%d offen offset:%d" % (b + 4*i, b + 4*i + 3, sr, (k & 3) * 1024), "k%d" % k)
    for k in range(W): loads(k)
    for k in range(28):
        b = 16 + 16 * (k % W)
        a.vm_wait("k%d" % k)
        for tb in range(2):
            for cb in range(2):
                t = 2 * tb + cb
                A = b + 8 * cb; B = b + 4 + 8 * tb
                a("v_mfma_f32_32x32x16_bf16 a[%d:%d], v[%d:%d], v[%d:%d], %s" % (16*t, 16*t + 15, A, A + 3, B, B + 3, "0" if k == 0 else "a[%d:%d]" % (16*t, 16*t + 15)))
        if k + W < 28: loads(k + W)
    a("s_lshl_b32 s32, s3, 14")
    a("v_add_u32 v5, s32, v2")
    for t in range(4):
        for q in range(4):
            a("ds_write_b128 v5, a[%d:%d] offset:%d" % (16*t + 4*q, 16*t + 4*q + 3, t * 4096 + q * 1024))
    a("s_lshl_b32 s32, s3, 12")
    a("v_add_u32 v5, s32, v2")
    a("s_waitcnt lgkmcnt(0)")
    a("s_barrier")
    for sw in range(4):
        for q in range(4):
            a("ds_read_b128 v[%d:%d], v5 offset:%d" % (16 + 16*sw + 4*q, 19 + 16*sw + 4*q, sw * 16384 + q * 1024))
    a("s_waitcnt lgkmcnt(8)")
    for r in range(16): a("v_add_f32 v%d, v%d, v%d" % (16 + r, 16 + r, 32 + r))
    a("s_waitcnt lgkmcnt(0)")
    for r in range(16): a("v_add_f32 v%d, v%d, v%d" % (48 + r, 48 + r, 64 + r))
    for r in range(16): a("v_add_f32 v%d, v%d, v%d" % (16 + r, 16 + r, 48 + r))
    for d in range(8):
        a("v_lshlrev_b32 v6, 16, v%d" % (8 + d))
        a("v_and_b32 v7, 0xffff0000, v%d" % (8 + d))
        a("v_add_f32 v6, v6, v%d" % (16 + 2*d))
        a("v_add_f32 v7, v7, v%d" % (17 + 2*d))
        a("v_cvt_pk_bf16_f32 v%d, v6, v7" % (80 + d))
    a("buffer_store_dwordx4 v[80:83], v3, s[8:11], 0 offen")
    a("buffer_store_dwordx4 v[84:87], v3, s[8:11], 0 offen offset:16")
    a.label("K4_done")
    a("s_endpgm")
    return kernel_desc(name, 256 + 64, 64, 256), "; @launch kernel=%s grid=(224,1,1) block=(256,1,1) lds=65536" % name
```

```python
import numpy as np
MB = 1 << 20
S, D, H, DH, F = 2048, 448, 16, 28, 1792
WS_PHIQ = 0
WS_KVP = 4 * MB
WS_KVA = 6 * MB
WS_WOP = 7 * MB
WS_WGU = 8 * MB
WS_CS = 12 * MB
WS_WDP = 13 * MB
WS_HF = 16 * MB
WS_HR = 18 * MB
WS_HH = 20 * MB
WS_SIZE = 32 * MB

def drow(g, r):
    return (r >> 2) * 8 + 4 * g + (r & 3)

def k3_kcol(s, g, j):
    sig = 8 * s + j
    c = sig // 14; r = sig % 14
    return 28 * c + 14 * g + r

def o_d(g, r):
    if r < 12: return 4 * (2 * (r >> 2) + g) + (r & 3)
    if r < 14: return 24 + 2 * g + (r - 12)
    return None

def pack_gu(wg, wu):
    out = np.zeros((112, 28, 64, 8), dtype=wg.dtype)
    for ft in range(112):
        for s in range(28):
            for g in range(2):
                for j in range(8):
                    k = k3_kcol(s, g, j)
                    out[ft, s, g*32:g*32+16, j] = wg[k, 16*ft:16*ft+16]
                    out[ft, s, g*32+16:g*32+32, j] = wu[k, 16*ft:16*ft+16]
    return out

def pack_dn(wd):
    out = np.zeros((14, 112, 64, 8), dtype=wd.dtype)
    i = np.arange(32)
    col = 16 * ((i >> 2) & 1) + 4 * (i >> 3) + (i & 3)
    for ct in range(14):
        for ks in range(112):
            for g in range(2):
                for j in range(8):
                    f = 16 * ks + 8 * (j >> 2) + 4 * g + (j & 3)
                    out[ct, ks, g*32:(g+1)*32, j] = wd[f, 32*ct + col]
    return out

def pack_wo(wo):
    out = np.zeros((16, 32, 64, 8), dtype=wo.dtype)
    for c in range(16):
        for ks in range(32):
            head = ks >> 1; sp = ks & 1
            for g in range(2):
                for j in range(8):
                    d = o_d(g, 8 * sp + j)
                    if d is None: continue
                    for i in range(32):
                        q = i >> 3; gp = (i >> 2) & 1; rp = 4 * q + (i & 3)
                        if rp < 14:
                            out[c, ks, g*32 + i, j] = wo[28*head + d, 28*c + 14*gp + rp]
    return out
```

```python
import sys
from gen_common import *
from gen_k0 import gen_k0

def build(kernels, path):
    a = Asm()
    descs = []; launches = []
    for k in kernels:
        d, l = k(a)
        descs.append(d); launches.append(l)
    txt = "\n".join(launches) + "\n.amdgcn_target \"amdgcn-amd-amdhsa--gfx950\"\n.text\n" + a.text() + ".section .rodata,\"a\"\n" + "".join(descs)
    open(path, "w").write(txt)

if __name__ == "__main__":
    ks = [gen_k0]
    try:
        from gen_k1 import gen_k1, gen_k1b
        ks += [gen_k1, gen_k1b]
        from gen_k2 import gen_k2
        ks += [gen_k2]
        from gen_k3 import gen_k3
        ks += [gen_k3]
        from gen_k4 import gen_k4
        ks += [gen_k4]
    except ImportError as e:
        print("partial:", e)
    build(ks, sys.argv[1] if len(sys.argv) > 1 else "cur.s")
```

```python
from asmlib import Asm
from layout import *

KA = dict(x=0, wqkv=8, wphi=16, wo=24, bx=32, wg=40, wu=48, wd=56, out=64, dbg=72, ws=80)
NBYTES = dict(x=S*D*2, wqkv=D*3*D*2, wphi=H*DH*DH*2, wo=D*D*2, wg=D*F*2, wu=D*F*2, wd=F*D*2, out=S*D*2, dbg=256, ws=WS_SIZE)

def kernel_head(a, name):
    a.raw(".globl %s\n.p2align 8\n.type %s,@function\n%s:" % (name, name, name))

def kernel_desc(name, vgpr, sgpr=102, accum=None):
    if accum is None: accum = (vgpr + 3) // 4 * 4
    accum = min(accum, 256)
    return """.p2align 6
.amdhsa_kernel %s
  .amdhsa_next_free_vgpr %d
  .amdhsa_next_free_sgpr %d
  .amdhsa_accum_offset %d
  .amdhsa_group_segment_fixed_size 0
  .amdhsa_kernarg_size 88
  .amdhsa_user_sgpr_count 2
  .amdhsa_user_sgpr_kernarg_segment_ptr 1
  .amdhsa_system_sgpr_workgroup_id_x 1
.end_amdhsa_kernel
""" % (name, vgpr, sgpr, accum)

def load_srds(a, specs):
    for nm, sb in specs:
        a("s_load_dwordx2 s[%d:%d], s[0:1], %d" % (sb, sb + 1, KA[nm]))
    for nm, sb in specs:
        a("s_mov_b32 s%d, 0x%x" % (sb + 2, NBYTES[nm]))
        a("s_mov_b32 s%d, 0x00020000" % (sb + 3))
    a("s_waitcnt lgkmcnt(0)")

import os
STAMP = bool(os.environ.get("STAMP"))
WS_STAMP = 30 * MB
class Stamper:
    def __init__(self, a, kid):
        self.a = a; self.kid = kid; self.n = 0; self.names = []
    def __call__(self, name):
        if not STAMP: return
        a = self.a
        assert self.n < 16
        a("s_memtime s[%d:%d]" % (64 + 2*self.n, 65 + 2*self.n))
        a("s_waitcnt lgkmcnt(0)")
        self.names.append(name); self.n += 1
    def real(self):
        if not STAMP: return
        self.a("s_memrealtime s[%d:%d]" % (96 + 2*self.nr, 97 + 2*self.nr)); self.a("s_waitcnt lgkmcnt(0)"); self.nr += 1
    nr = 0
    def dump(self, wave_sgpr, vtmp=(250, 251)):
        if not STAMP: return
        a = self.a
        a("s_lshl_b32 s62, s2, 3")
        a("s_add_u32 s62, s62, %s" % wave_sgpr)
        a("s_lshl_b32 s62, s62, 7")
        a("s_add_u32 s62, s62, 0x%x" % (WS_STAMP + self.kid * 262144))
        a("v_mov_b32 v%d, 0" % vtmp[0])
        for i in range(self.n):
            a("v_mov_b32 v%d, s%d" % (vtmp[1], 64 + 2*i))
            a("buffer_store_dword v%d, v%d, s[24:27], s62 offen offset:%d" % (vtmp[1], vtmp[0], 4*i))
        for i in range(self.nr):
            a("v_mov_b32 v%d, s%d" % (vtmp[1], 96 + 2*i))
            a("buffer_store_dword v%d, v%d, s[24:27], s62 offen offset:%d" % (vtmp[1], vtmp[0], 64 + 4*i))

STF = os.environ.get("STF", "sc1")
```

```python
from gen_common import *

def gen_k0(a, name="k1b_kernel"):
    kernel_head(a, name)
    a("s_cmp_ge_u32 s2, 185")
    a("s_cbranch_scc1 K0_done")
    a("s_cmp_ge_u32 s2, 16")
    a("s_cbranch_scc1 K0_repack")
    load_srds(a, [("ws", 24)])
    a("v_and_b32 v1, 63, v0")
    a("v_lshrrev_b32 v2, 6, v0")
    a("v_lshlrev_b32 v3, 11, v2")
    a("v_lshl_add_u32 v3, v1, 4, v3")
    a("s_lshl_b32 s4, s2, 17")
    a("s_add_u32 s4, s4, 0x%x" % WS_KVP)
    for rb in range(16):
        a("buffer_load_dwordx4 v[%d:%d], v3, s[24:27], s4 offen" % (8 + 8*rb, 11 + 8*rb))
        a("buffer_load_dwordx4 v[%d:%d], v3, s[24:27], s4 offen offset:1024" % (12 + 8*rb, 15 + 8*rb))
        a("s_add_u32 s4, s4, 8192")
    for rb in range(1, 16):
        a("s_waitcnt vmcnt(%d)" % (2 * (15 - rb)))
        for i in range(8):
            a("v_add_f32 v%d, v%d, v%d" % (8 + i, 8 + i, 8 + 8*rb + i))
    for d in range(4):
        a("v_cvt_pk_bf16_f32 v%d, v%d, v%d" % (4 + d, 8 + 2*d, 9 + 2*d))
    a("v_lshlrev_b32 v3, 4, v0")
    a("s_lshl_b32 s4, s2, 12")
    a("s_add_u32 s4, s4, 0x%x" % WS_KVA)
    a("buffer_store_dwordx4 v[4:7], v3, s[24:27], s4 offen")
    a("s_branch K0_done")
    a.label("K0_repack")
    a("s_sub_u32 s2, s2, 16")
    load_srds(a, [("wg", 8), ("wu", 12), ("wd", 16), ("wo", 20), ("ws", 24)])
    a("s_mov_b32 s30, 0x05040100")
    a("s_mov_b32 s31, 0x07060302")
    a("s_mov_b32 s32, 0x3f803f80")
    a("s_cmp_ge_u32 s2, 161")
    a("s_cbranch_scc1 K0_wo")
    a("s_cmp_ge_u32 s2, 112")
    a("s_cbranch_scc1 K0_dn")
    a("v_lshrrev_b32 v3, 7, v0")
    a("v_readfirstlane_b32 s33, v3")
    a("s_cmp_eq_u32 s33, 0")
    a("s_cselect_b32 s4, s8, s12")
    a("s_cselect_b32 s5, s9, s13")
    a("s_mov_b32 s6, s10")
    a("s_mov_b32 s7, s11")
    a("v_and_b32 v4, 127, v0")
    a("v_and_b32 v5, 1, v4")
    a("v_lshrrev_b32 v6, 1, v4")
    a("v_lshrrev_b32 v7, 1, v6")
    a("v_and_b32 v8, 1, v6")
    a("v_cmp_gt_u32 vcc, 112, v4")
    a("s_and_saveexec_b64 s[34:35], vcc")
    a("s_cbranch_execz K0_gu_skip")
    a("s_lshl_b32 s36, s2, 5")
    a("v_lshlrev_b32 v9, 4, v5")
    a("v_add_u32 v9, s36, v9")
    a("v_mul_u32_u24 v10, %d, v8" % (14 * 3584))
    a("v_add_u32 v9, v9, v10")
    a("v_lshlrev_b32 v11, 3, v7")
    a("s_movk_i32 s37, 4682")
    a("s_movk_i32 s38, 3584")
    for j in range(8):
        a("v_add_u32 v12, %d, v11" % j)
        a("v_mul_u32_u24 v13, s37, v12")
        a("v_lshrrev_b32 v13, 16, v13")
        a("v_mad_u32_u24 v12, v13, 14, v12")
        a("v_mad_u32_u24 v12, v12, s38, v9")
        a("buffer_load_dwordx4 v[%d:%d], v12, s[4:7], 0 offen" % (16 + 4*j, 19 + 4*j))
    a("s_mul_i32 s36, s2, 147")
    a("s_lshr_b32 s36, s36, 10")
    a("s_mul_i32 s39, s36, 7")
    a("s_sub_u32 s39, s2, s39")
    a("s_mul_i32 s36, s36, 196")
    a("s_mov_b32 s40, s39")
    a("s_mov_b32 s41, 3")
    a("s_cmp_ge_u32 s39, 3")
    a("s_cselect_b32 s41, 2, s41")
    a("s_cselect_b32 s42, 81, 0")
    a("s_add_u32 s40, s40, s42")
    a("s_cmp_ge_u32 s39, 5")
    a("s_cselect_b32 s41, 1, s41")
    a("s_cselect_b32 s40, 140, s40")
    a("s_cmp_ge_u32 s39, 6")
    a("s_cselect_b32 s40, 168, s40")
    a("s_add_u32 s36, s36, s40")
    a("v_mul_u32_u24 v12, s41, v7")
    a("v_add_u32 v12, s36, v12")
    a("v_lshlrev_b32 v12, 6, v12")
    a("v_lshl_add_u32 v12, v8, 5, v12")
    a("v_lshl_add_u32 v12, v3, 4, v12")
    a("v_lshl_add_u32 v12, v5, 3, v12")
    a("v_lshlrev_b32 v12, 4, v12")
    a("s_mov_b32 s36, 0x%x" % WS_WGU)
    a("v_lshlrev_b32 v13, 4, v3")
    a("v_lshl_add_u32 v13, v5, 3, v13")
    a("v_mul_u32_u24 v13, 57, v13")
    a("v_add_u32 v13, v13, v6")
    a("v_lshlrev_b32 v13, 2, v13")
    a("s_waitcnt vmcnt(0)")
    for cc in range(8):
        sel = "s30" if cc % 2 == 0 else "s31"
        for jj in range(4):
            a("v_perm_b32 v%d, v%d, v%d, %s" % (48 + 4*cc + jj, 16 + 4*(2*jj+1) + (cc >> 1), 16 + 4*(2*jj) + (cc >> 1), sel))
    a("v_mov_b32 v14, s32")
    for cc in range(8):
        a("buffer_store_dwordx4 v[%d:%d], v12, s[24:27], s36 offen offset:%d" % (48 + 4*cc, 51 + 4*cc, 16 * cc))
        a("v_mov_b32 v%d, 0" % (80 + cc))
    for jj in range(4):
        for cc in range(8):
            a("v_dot2_f32_bf16 v%d, v%d, v14, v%d" % (80 + cc, 48 + 4*cc + jj, 80 + cc))
    for cc in range(8):
        a("ds_write_b32 v13, v%d offset:%d" % (80 + cc, 4 * 57 * cc))
    a.label("K0_gu_skip")
    a("s_mov_b64 exec, s[34:35]")
    a("s_waitcnt lgkmcnt(0)")
    a("s_barrier")
    a("v_lshrrev_b32 v1, 3, v0")
    a("v_and_b32 v2, 7, v0")
    a("v_mul_u32_u24 v4, 57, v1")
    a("v_mad_u32_u24 v4, v2, 7, v4")
    a("v_lshlrev_b32 v4, 2, v4")
    for i in range(7): a("ds_read_b32 v%d, v4 offset:%d" % (8 + i, 4 * i))
    a("s_waitcnt lgkmcnt(0)")
    for i in range(1, 7): a("v_add_f32 v8, v8, v%d" % (8 + i))
    for sw in (0x041F, 0x081F, 0x101F):
        a("ds_swizzle_b32 v9, v8 offset:0x%x" % sw)
        a("s_waitcnt lgkmcnt(0)")
        a("v_add_f32 v8, v8, v9")
    a("v_cmp_eq_u32 vcc, 0, v2")
    a("s_and_saveexec_b64 s[34:35], vcc")
    a("v_lshlrev_b32 v1, 2, v1")
    a("s_lshl_b32 s36, s2, 7")
    a("s_add_u32 s36, s36, 0x%x" % WS_CS)
    a("buffer_store_dword v8, v1, s[24:27], s36 offen")
    a("s_branch K0_done")
    a.label("K0_dn")
    a("s_sub_u32 s33, s2, 112")
    a("s_lshl_b32 s33, s33, 8")
    a("v_add_u32 v4, s33, v0")
    a("s_mov_b32 s37, %d" % ((1 << 20) // 56 + 1))
    a("v_mul_u32_u24 v6, s37, v4")
    a("v_lshrrev_b32 v6, 20, v6")
    a("v_mul_u32_u24 v5, 56, v6")
    a("v_sub_u32 v5, v4, v5")
    a("v_lshrrev_b32 v7, 1, v6")
    a("v_and_b32 v8, 1, v6")
    a("v_lshlrev_b32 v9, 4, v7")
    a("v_lshl_add_u32 v9, v8, 2, v9")
    a("v_mul_u32_u24 v9, 896, v9")
    a("v_lshl_add_u32 v9, v5, 4, v9")
    for j in range(8):
        a("s_mov_b32 s%d, %d" % (40 + j, (8 * (j >> 2) + (j & 3)) * 896))
    for j in range(8):
        a("buffer_load_dwordx4 v[%d:%d], v9, s[16:19], s%d offen" % (16 + 4*j, 19 + 4*j, 40 + j))
    a("v_lshrrev_b32 v10, 2, v5")
    a("v_mul_u32_u24 v10, 112, v10")
    a("v_add_u32 v10, v10, v7")
    a("v_lshlrev_b32 v10, 6, v10")
    a("v_lshl_add_u32 v10, v8, 5, v10")
    a("v_and_b32 v11, 1, v5")
    a("v_lshl_add_u32 v10, v11, 4, v10")
    a("v_bfe_u32 v11, v5, 1, 1")
    a("v_lshl_add_u32 v10, v11, 2, v10")
    a("v_lshlrev_b32 v12, 4, v10")
    a("s_mov_b32 s36, 0x%x" % WS_WDP)
    a("s_waitcnt vmcnt(0)")
    for cc in range(8):
        sel = "s30" if cc % 2 == 0 else "s31"
        for jj in range(4):
            a("v_perm_b32 v%d, v%d, v%d, %s" % (48 + 4*cc + jj, 16 + 4*(2*jj+1) + (cc >> 1), 16 + 4*(2*jj) + (cc >> 1), sel))
    for cc in range(8):
        a("buffer_store_dwordx4 v[%d:%d], v12, s[24:27], s36 offen offset:%d" % (48 + 4*cc, 51 + 4*cc, (cc >> 2) * 128 + (cc & 3) * 16))
    a("s_branch K0_done")
    a.label("K0_wo")
    a("s_sub_u32 s33, s2, 161")
    a("s_lshl_b32 s33, s33, 8")
    a("v_add_u32 v4, s33, v0")
    a("v_and_b32 v5, 31, v4")
    a("v_lshrrev_b32 v6, 5, v4")
    a("v_lshrrev_b32 v7, 1, v6")
    a("v_and_b32 v8, 1, v6")
    a("v_lshrrev_b32 v9, 1, v7")
    a("v_and_b32 v10, 1, v7")
    a("v_cmp_eq_u32 s[40:41], 0, v10")
    a("v_mul_u32_u24 v11, 28, v5")
    a("v_mul_u32_u24 v12, 28, v9")
    a("v_lshlrev_b32 v13, 2, v8")
    a("v_lshlrev_b32 v14, 1, v8")
    a("v_mov_b32 v15, 0x7000000")
    a("s_movk_i32 s38, 896")
    for j in range(8):
        a("v_add_u32 v88, %d, v13" % (8 * (j >> 2) + (j & 3)))
        if j < 4:
            a("v_add_u32 v89, %d, v13" % (16 + j))
        elif j < 6:
            a("v_add_u32 v89, %d, v14" % (24 + j - 4))
        if j < 6:
            a("v_cndmask_b32 v88, v89, v88, s[40:41]")
            a("v_add_u32 v88, v88, v12")
            a("v_mad_u32_u24 v88, v88, s38, v11")
        else:
            a("v_add_u32 v88, v88, v12")
            a("v_mad_u32_u24 v88, v88, s38, v11")
            a("v_cndmask_b32 v88, v15, v88, s[40:41]")
        a("buffer_load_dwordx4 v[%d:%d], v88, s[20:23], 0 offen" % (16 + 8*j, 19 + 8*j))
        a("buffer_load_dwordx3 v[%d:%d], v88, s[20:23], 0 offen offset:16" % (20 + 8*j, 22 + 8*j))
    a("v_lshrrev_b32 v10, 1, v5")
    a("v_lshl_add_u32 v10, v10, 5, v7")
    a("v_lshlrev_b32 v10, 6, v10")
    a("v_lshl_add_u32 v10, v8, 5, v10")
    a("v_and_b32 v11, 1, v5")
    a("v_lshl_add_u32 v10, v11, 2, v10")
    a("v_lshlrev_b32 v12, 4, v10")
    a("s_mov_b32 s36, 0x%x" % WS_WOP)
    a("s_waitcnt vmcnt(0)")
    for rp in range(16):
        ob = 96 + 4 * rp
        if rp < 14:
            sel = "s30" if rp % 2 == 0 else "s31"
            for jj in range(4):
                a("v_perm_b32 v%d, v%d, v%d, %s" % (ob + jj, 16 + 8*(2*jj+1) + (rp >> 1), 16 + 8*(2*jj) + (rp >> 1), sel))
        else:
            for jj in range(4): a("v_mov_b32 v%d, 0" % (ob + jj))
    for rp in range(16):
        ob = 96 + 4 * rp
        a("buffer_store_dwordx4 v[%d:%d], v12, s[24:27], s36 offen offset:%d" % (ob, ob + 3, (rp >> 2) * 128 + (rp & 3) * 16))
    a.label("K0_done")
    a("s_endpgm")
    return kernel_desc(name, 160, 48), "; @launch kernel=%s grid=(185,1,1) block=(256,1,1) lds=8192" % name
```

```python
from gen_common import *

XBASE = 86016
MISC = 151552
K1_LDS = 154624
def f32(x): return "0x%08x" % np.float32(x).view(np.uint32)

def softmax_pm(a, P, T, OUTP, OUTN, sL):
    mx, mn, t1, t2, sp, sn = T, T + 1, T + 2, T + 3, T + 4, T + 5
    EP = T + 6; EN = T + 20
    a("v_max3_f32 v%d, v%d, v%d, v%d" % (mx, P, P + 1, P + 2))
    a("v_min3_f32 v%d, v%d, v%d, v%d" % (mn, P, P + 1, P + 2))
    for r in range(3, 13, 2):
        a("v_max3_f32 v%d, v%d, v%d, v%d" % (mx, mx, P + r, P + r + 1))
        a("v_min3_f32 v%d, v%d, v%d, v%d" % (mn, mn, P + r, P + r + 1))
    a("v_max_f32 v%d, v%d, v%d" % (mx, mx, P + 13))
    a("v_min_f32 v%d, v%d, v%d" % (mn, mn, P + 13))
    a("v_mov_b32 v%d, v%d" % (t1, mx))
    a("v_mov_b32 v%d, v%d" % (t2, mn))
    a("v_permlane32_swap_b32 v%d, v%d" % (mx, t1))
    a("v_permlane32_swap_b32 v%d, v%d" % (mn, t2))
    a("v_max_f32 v%d, v%d, v%d" % (mx, mx, t1))
    a("v_min_f32 v%d, v%d, v%d" % (mn, mn, t2))
    a("v_mul_f32 v%d, %s, v%d" % (mx, sL, mx))
    a("v_mul_f32 v%d, %s, v%d" % (mn, sL, mn))
    for r in range(14):
        a("v_fma_f32 v%d, v%d, %s, -v%d" % (EP + r, P + r, sL, mx))
        a("v_fma_f32 v%d, -v%d, %s, v%d" % (EN + r, P + r, sL, mn))
    for r in range(14):
        a("v_exp_f32 v%d, v%d" % (EP + r, EP + r))
        a("v_exp_f32 v%d, v%d" % (EN + r, EN + r))
    a("v_add_f32 v%d, v%d, v%d" % (sp, EP, EP + 1))
    a("v_add_f32 v%d, v%d, v%d" % (sn, EN, EN + 1))
    for r in range(2, 14):
        a("v_add_f32 v%d, v%d, v%d" % (sp, sp, EP + r))
        a("v_add_f32 v%d, v%d, v%d" % (sn, sn, EN + r))
    a("v_mov_b32 v%d, v%d" % (t1, sp))
    a("v_mov_b32 v%d, v%d" % (t2, sn))
    a("v_permlane32_swap_b32 v%d, v%d" % (sp, t1))
    a("v_permlane32_swap_b32 v%d, v%d" % (sn, t2))
    a("v_add_f32 v%d, v%d, v%d" % (sp, sp, t1))
    a("v_add_f32 v%d, v%d, v%d" % (sn, sn, t2))
    a("v_rcp_f32 v%d, v%d" % (sp, sp))
    a("v_rcp_f32 v%d, v%d" % (sn, sn))
    for r in range(14):
        a("v_mul_f32 v%d, v%d, v%d" % (EP + r, EP + r, sp))
        a("v_mul_f32 v%d, v%d, v%d" % (EN + r, EN + r, sn))
    for d in range(7):
        a("v_cvt_pk_bf16_f32 v%d, v%d, v%d" % (OUTP + d, EP + 2*d, EP + 2*d + 1))
        a("v_cvt_pk_bf16_f32 v%d, v%d, v%d" % (OUTN + d, EN + 2*d, EN + 2*d + 1))
    a("v_mov_b32 v%d, 0" % (OUTP + 7))
    a("v_mov_b32 v%d, 0" % (OUTN + 7))

def gen_k1(a, name="k1_kernel"):
    kernel_head(a, name)
    a("s_cmp_ge_u32 s2, 256")
    a("s_cbranch_scc1 K1_done")
    global st
    st = Stamper(a, 1)
    st.real(); st("start")
    for nm, sb in [("x", 8), ("wqkv", 12), ("wphi", 16), ("ws", 24)]:
        a("s_load_dwordx2 s[%d:%d], s[0:1], %d" % (sb, sb + 1, KA[nm]))
        a("s_mov_b32 s%d, 0x%x" % (sb + 2, NBYTES[nm]))
        a("s_mov_b32 s%d, 0x00020000" % (sb + 3))
    a("v_lshrrev_b32 v1, 6, v0")
    a("v_readfirstlane_b32 s3, v1")
    a("v_and_b32 v1, 63, v0")
    a("s_and_b32 s30, s2, 7")
    a("s_lshr_b32 s31, s2, 3")
    a("s_lshr_b32 s4, s30, 1")
    a("s_lshl_b32 s4, s4, 2")
    a("s_and_b32 s32, s31, 3")
    a("s_add_u32 s4, s4, s32")
    a("s_and_b32 s5, s30, 1")
    a("s_lshl_b32 s5, s5, 3")
    a("s_lshr_b32 s32, s31, 2")
    a("s_add_u32 s5, s5, s32")
    a("s_and_b32 s6, s3, 3")
    a("s_lshr_b32 s7, s3, 2")
    a("v_lshrrev_b32 v15, 3, v1")
    a("v_and_b32 v16, 7, v1")
    a("v_lshrrev_b32 v17, 1, v15")
    a("s_lshl_b32 s32, s4, 7")
    a("s_lshl_b32 s33, s3, 4")
    a("s_add_u32 s32, s32, s33")
    a("v_add_u32 v18, s32, v15")
    a("v_mul_u32_u24 v18, 896, v18")
    a("v_xor_b32 v19, v16, v17")
    a("v_lshl_add_u32 v2, v19, 4, v18")
    a("v_xor_b32 v19, 4, v19")
    a("v_lshl_add_u32 v3, v19, 4, v18")
    a("v_add_u32 v3, %d, v3" % (8 * 896))
    a("v_lshrrev_b32 v15, 2, v1")
    a("s_lshl_b32 s32, s6, 4")
    a("v_add_u32 v15, s32, v15")
    a("v_and_b32 v16, 3, v1")
    a("v_lshlrev_b32 v14, 6, v15")
    a("v_lshl_add_u32 v14, v16, 1, v14")
    a("v_add_u32 v14, %d, v14" % (2 * 28672 + 56))
    a("v_mul_u32_u24 v15, 2688, v15")
    a("v_lshl_add_u32 v4, v16, 4, v15")
    a("s_mul_i32 s32, s5, 56")
    a("v_add_u32 v4, s32, v4")
    a("s_lshl_b32 s37, s3, 11")
    a("s_add_u32 s37, s37, %d" % XBASE)
    a("s_lshl_b32 s38, s6, 10")
    a("s_waitcnt lgkmcnt(0)")
    a("s_cmp_eq_u32 s7, 0")
    a("s_cbranch_scc0 K1_kh1")
    for kh in range(2):
        if kh == 1:
            a.label("K1_kh1")
            a.hist = []; a.alts = []; a.vmq = []
        n0 = st.n
        body(a, kh)
        if kh == 0: st.n = n0
    a.label("K1_fin")
    st("end"); st.real(); st.dump("s3", (220, 221))
    a.label("K1_done")
    a("s_endpgm")
    return kernel_desc(name, 224, 102), "; @launch kernel=%s grid=(256,1,1) block=(512,1,1) lds=%d" % (name, K1_LDS)

def body(a, kh):
    ACC = [96, 112, 128]; GR = 144; CSA = 160
    def x_ops(p):
        slot = p % 4
        return [(["s_movk_i32 s40, %d" % (p * 128), "s_add_u32 m0, s37, %d" % (slot * 16384)], "buffer_load_dwordx4 v2, s[8:11], s40 offen lds", "s%d" % p),
                (["s_add_u32 m0, s37, %d" % (slot * 16384 + 1024)], "buffer_load_dwordx4 v3, s[8:11], s40 offen lds", "s%d" % p)]
    def w_ops(p):
        return [(["s_mov_b32 s41, %d" % (p * 64 * 2688 + m * 896), "s_add_u32 m0, s38, %d" % (m * 28672 + p * 4096)], "buffer_load_dwordx4 v4, s[12:15], s41 offen lds", "s%d" % p) for m in ((0, 1) if kh == 0 else (2,))]
    def emit(op):
        for x in op[0]: a(x)
        a.vm(op[1], op[2])
    NPRE = int(os.environ.get("K1PRE", 2))
    for p in range(NPRE):
        for op in w_ops(p) + x_ops(p): emit(op)
    a("v_and_b32 v15, 31, v1")
    a("v_lshrrev_b32 v16, 5, v1")
    a("v_lshrrev_b32 v17, 3, v15")
    a("s_lshl_b32 s32, s6, 2")
    a("v_add_u32 v17, s32, v17")
    a("v_lshlrev_b32 v17, 10, v17")
    a("v_and_b32 v18, 7, v15")
    a("v_lshl_add_u32 v17, v18, 7, v17")
    a("v_add_u32 v17, %d, v17" % XBASE)
    a("v_bfe_u32 v18, v15, 1, 3")
    a("v_add_u32 v19, %d, v16" % (2 * kh))
    a("v_xor_b32 v5, v19, v18")
    a("v_lshl_add_u32 v5, v5, 4, v17")
    a("v_add_u32 v19, 4, v19")
    a("v_xor_b32 v6, v19, v18")
    a("v_lshl_add_u32 v6, v6, 4, v17")
    a("v_bfe_u32 v15, v1, 4, 1")
    a("v_bfe_u32 v17, v1, 2, 2")
    a("v_and_b32 v18, 3, v1")
    a("v_lshl_add_u32 v7, v16, 3, v17")
    a("v_lshlrev_b32 v7, 6, v7")
    a("v_lshl_add_u32 v7, v15, 5, v7")
    a("v_lshl_add_u32 v7, v18, 3, v7")
    a("v_add_u32 v8, 57344, v7")
    a("v_mov_b32 v10, 0x3f803f80")
    a("v_mov_b32 v11, 0")
    a("v_mov_b32 v12, 0")
    a("v_bfe_u32 v15, v1, 3, 2")
    a("v_bfe_u32 v17, v1, 2, 1")
    a("v_lshl_add_u32 v15, v15, 2, v18")
    a("v_mad_u32_u24 v17, v17, 14, v15")
    a("v_lshlrev_b32 v17, 1, v17")
    a("v_mul_u32_u24 v19, 224, v16")
    a("v_add_u32 v17, v17, v19")
    a("s_mul_i32 s32, s5, 1568")
    a("v_add_u32 v17, s32, v17")
    a("v_mov_b32 v19, 0x7000000")
    a("v_cmp_gt_u32 vcc, 14, v15")
    a("v_cndmask_b32 v28, v19, v17, vcc")
    a("v_cmp_eq_u32 vcc, 0, v16")
    a("v_cndmask_b32 v29, v19, v28, vcc")
    a("s_mov_b32 s36, 0x3fb8aa3b")
    phi_ops = []
    for sp in range(2):
        for j in range(8):
            reg = (20 if j % 2 == 0 else 208) + 4 * sp + (j >> 1)
            ar = 29 if (sp == 1 and j >= 4) else 28
            off = (16 * sp + 8 * (j >> 2) + (j & 3)) * 56
            phi_ops.append(([], "buffer_load_ushort v%d, v%d, s[16:19], 0 offen offset:%d" % (reg, ar, off), "phi"))
    def read_ops(p):
        b = p & 1
        ops = []
        for u in range(2):
            s = 4 * p + kh + 2 * u
            base = 32 + b * 32 + u * 16
            ops.append("ds_read_b128 v[%d:%d], v%d offset:%d" % (base, base + 3, 5 + u, (p % 4) * 16384))
            for m in range(3):
                ar = 8 if m == 2 else 7
                off = (0 if m == 2 else m * 28672) + s * 1024
                ops.append("ds_read_b64_tr_b16 v[%d:%d], v%d offset:%d" % (base + 4 + 4*m, base + 5 + 4*m, ar, off))
                ops.append("ds_read_b64_tr_b16 v[%d:%d], v%d offset:%d" % (base + 6 + 4*m, base + 7 + 4*m, ar, off + 256))
        return ops
    def reads(p):
        for o in read_ops(p): a(o)
    def compute(p, vmp, rd):
        b = p & 1
        for u in range(2):
            s = 4 * p + kh + 2 * u
            base = 32 + b * 32 + u * 16
            first = (p == 0 and u == 0)
            for m in range(4):
                if m < 3:
                    c = "0" if first else "v[%d:%d]" % (ACC[m], ACC[m] + 15)
                    a("v_mfma_f32_32x32x16_bf16 v[%d:%d], v[%d:%d], v[%d:%d], %s" % (ACC[m], ACC[m] + 15, base + 4 + 4*m, base + 7 + 4*m, base, base + 3, c))
                else:
                    a("v_mfma_f32_32x32x16_bf16 v[%d:%d], v[%d:%d], v[%d:%d], %s" % (GR, GR + 15, base, base + 3, base, base + 3, "0" if first else "v[%d:%d]" % (GR, GR + 15)))
                for _ in range(2):
                    if rd: a(rd.pop(0))
                if vmp: emit(vmp.pop(0))
                if m < 3:
                    lab = "K1_cs_%d_%d_%d" % (kh, s, m)
                    a("s_cmp_eq_u32 s6, %d" % m)
                    a("s_cbranch_scc0 %s" % lab)
                    a.skip_begin()
                    for d in range(4):
                        a("v_dot2_f32_bf16 v%d, v%d, v10, v%d" % (11 + (d & 1), base + 4 + 4*m + d, 11 + (d & 1)))
                    a.skip_end(lab)
        while rd: a(rd.pop(0))
        while vmp: emit(vmp.pop(0))
    def arrive(p):
        a.vm_wait("s%d" % p)
        if kh == 1:
            a("ds_write_b16 v14, v10 offset:%d" % (p * 4096))
        a("s_waitcnt lgkmcnt(0)")
        a("s_barrier")
    st("issued")
    arrive(0)
    st("s0")
    reads(0)
    if os.environ.get("K1MODE", "A") == "A":
        for p in range(NPRE, 3):
            for op in w_ops(p) + x_ops(p): emit(op)
    MODE = os.environ.get("K1MODE", "A")
    later = []
    for p in range(NPRE, 4): later += w_ops(p) + x_ops(p)
    for p in range(4, 7): later += w_ops(p)
    for p in range(7):
        vmp = []; rd = []
        if p < 6:
            arrive(p + 1)
            if p in (1, 3, 5): st("s%d" % (p + 1))
            rd = read_ops(p + 1)
            if MODE == "B":
                if p + 4 <= 6: vmp = x_ops(p + 4)
                if p == 0: vmp = later + vmp
                if p == 3: vmp = phi_ops[:8]
                if p == 4: vmp = phi_ops[8:]
            else:
                if p + 3 <= 6: vmp = w_ops(p + 3) + x_ops(p + 3)
                elif p == 4: vmp = phi_ops[:8]
                elif p == 5: vmp = phi_ops[8:]
        else:
            a("s_waitcnt lgkmcnt(0)")
        compute(p, vmp, rd)
    st("loop")
    a("s_mul_i32 s32, s6, 6144")
    a("v_lshlrev_b32 v19, 4, v1")
    a("v_add_u32 v18, s32, v19")
    send = ([ACC[1] + 4*q for q in range(4)] + [ACC[2] + 8, ACC[2] + 12]) if kh == 0 else ([ACC[0] + 4*q for q in range(4)] + [ACC[2], ACC[2] + 4])
    for i, r in enumerate(send):
        a("ds_write_b128 v18, v[%d:%d] offset:%d" % (r, r + 3, kh * 28672 + i * 1024))
    a("v_add_f32 v11, v11, v12")
    a("v_mov_b32 v12, v11")
    a("v_permlane32_swap_b32 v11, v12")
    a("v_add_f32 v11, v11, v12")
    a("v_and_b32 v17, 31, v1")
    a("s_lshl_b32 s32, s6, 8")
    a("s_add_u32 s32, s32, %d" % (MISC + 2048 + kh * 128))
    a("v_lshl_add_u32 v17, v17, 2, s32")
    a("ds_write_b32 v17, v11")
    a("v_and_b32 v15, 31, v1")
    a("v_and_b32 v16, 3, v1")
    a("v_bfe_u32 v17, v1, 3, 2")
    for c in range(1, 4): a("v_cmp_eq_u32 s[%d:%d], %d, v16" % (40 + 2*c, 41 + 2*c, c))
    for q in range(1, 4): a("v_cmp_eq_u32 s[%d:%d], %d, v17" % (48 + 2*q, 49 + 2*q, q))
    for q in range(4):
        for c in range(1, 4):
            a("v_cndmask_b32 v%d, v%d, v%d, s[%d:%d]" % (GR + 4*q, GR + 4*q, GR + 4*q + c, 40 + 2*c, 41 + 2*c))
    for q in range(1, 4):
        a("v_cndmask_b32 v%d, v%d, v%d, s[%d:%d]" % (GR, GR, GR + 4*q, 48 + 2*q, 49 + 2*q))
    a("s_lshl_b32 s32, s6, 5")
    a("v_add_u32 v16, s32, v15")
    a("v_lshlrev_b32 v17, 3, v16")
    a("v_add_u32 v17, %d, v17" % MISC)
    a("s_mov_b32 exec_lo, 0")
    a("ds_write_b32 v17, v%d offset:%d" % (ACC[2] + 12, kh * 1024))
    a("s_mov_b32 exec_lo, 0x0f0f0f0f")
    a("s_mov_b32 exec_hi, 0xf0f0f0f0")
    a("ds_write_b32 v17, v%d offset:%d" % (GR, kh * 1024 + 4))
    a("s_mov_b64 exec, -1")
    a("s_waitcnt lgkmcnt(0)")
    a("s_barrier")
    st("xchg")
    RX = 32
    for i in range(6):
        a("ds_read_b128 v[%d:%d], v18 offset:%d" % (RX + 4*i, RX + 4*i + 3, (1 - kh) * 28672 + i * 1024))
    a("ds_read_b64 v[10:11], v17")
    a("ds_read_b64 v[12:13], v17 offset:1024")
    mm = kh
    C0 = 144; C1 = 168
    a("v_lshrrev_b32 v18, 5, v1")
    a("v_lshlrev_b32 v18, 4, v18")
    a("v_add_u32 v18, %d, v18" % (MISC + 2048))
    for h2, C in ((0, C0), (1, C1)):
        for q in range(4):
            a("ds_read_b128 v[%d:%d], v18 offset:%d" % (C + 4*q, C + 4*q + 3, mm * 256 + h2 * 128 + q * 32))
        for q in range(2):
            a("ds_read_b128 v[%d:%d], v18 offset:%d" % (C + 16 + 4*q, C + 19 + 4*q, 2 * 256 + h2 * 128 + (2 * kh + q) * 32))
    own = [ACC[mm] + r for r in range(16)] + [ACC[2] + 8 * kh + r for r in range(8)]
    a("s_waitcnt lgkmcnt(12)")
    a("v_add_f32 v10, v10, v12")
    a("v_add_f32 v11, v11, v13")
    a("v_mul_f32 v10, %s, v10" % f32(-1.0 / 448))
    a("v_mul_f32 v11, %s, v11" % f32(1.0 / 448))
    a("v_fma_f32 v11, -v10, v10, v11")
    a("v_max_f32 v11, 0, v11")
    a("v_add_f32 v11, %s, v11" % f32(1e-5))
    a("v_rsq_f32 v11, v11")
    for i, r in enumerate(own):
        a("v_add_f32 v%d, v%d, v%d" % (r, r, RX + i))
    a("s_waitcnt lgkmcnt(0)")
    for i, r in enumerate(own):
        a("v_add_f32 v%d, v%d, v%d" % (C0 + i, C0 + i, C1 + i))
    for i, r in enumerate(own):
        a("v_fmac_f32 v%d, v10, v%d" % (r, C0 + i))
    for i, r in enumerate(own):
        a("v_mul_f32 v%d, v%d, v11" % (r, r))
    for d in range(8):
        a("v_cvt_pk_bf16_f32 v%d, v%d, v%d" % (32 + d, ACC[mm] + 2*d, ACC[mm] + 2*d + 1))
    a.vm_wait("phi")
    for d in range(8):
        a("v_lshl_or_b32 v%d, v%d, 16, v%d" % (20 + d, 208 + d, 20 + d))
    PQ = 144
    a("v_mfma_f32_32x32x16_bf16 v[%d:%d], v[20:23], v[32:35], 0" % (PQ, PQ + 15))
    a("v_mfma_f32_32x32x16_bf16 v[%d:%d], v[24:27], v[36:39], v[%d:%d]" % (PQ, PQ + 15, PQ, PQ + 15))
    a("v_mul_u32_u24 v19, 192, v16")
    a("v_lshrrev_b32 v18, 5, v1")
    a("v_add_u32 v19, %d, v19" % XBASE)
    a("v_lshl_add_u32 v17, v18, 3, v19")
    a("v_lshl_add_u32 v19, v18, 5, v19")
    VB = ACC[2] + 8 * kh
    for d in range(4):
        a("v_cvt_pk_bf16_f32 v%d, v%d, v%d" % (40 + d, VB + 2*d, VB + 2*d + 1))
    if kh == 0:
        a("ds_write_b64 v17, v[40:41] offset:128")
        a("ds_write_b64 v17, v[42:43] offset:144")
    else:
        a("ds_write_b64 v17, v[40:41] offset:160")
        a("v_permlane32_swap_b32 v42, v43")
        a("v_mov_b32 v43, 0x3f80")
        a("ds_write_b64 v17, v[42:43] offset:176")
    softmax_pm(a, PQ, 168, 48, 56, "s36")
    if kh == 0:
        a("s_lshl_b32 s32, s4, 2")
        a("s_add_u32 s32, s32, s6")
        a("s_lshl_b32 s32, s32, 4")
        a("s_add_u32 s32, s32, s5")
        a("s_lshl_b32 s32, s32, 12")
        if WS_PHIQ: a("s_add_u32 s32, s32, 0x%x" % WS_PHIQ)
        a("v_lshlrev_b32 v18, 4, v1")
        for ks in range(4):
            a("buffer_store_dwordx4 v[%d:%d], v18, s[24:27], s32 offen offset:%d %s" % (48 + 4*ks, 51 + 4*ks, ks * 1024, STF))
    else:
        a("ds_write_b128 v19, v[48:51]")
        a("ds_write_b128 v19, v[52:55] offset:16")
        a("ds_write_b128 v19, v[56:59] offset:64")
        a("ds_write_b128 v19, v[60:63] offset:80")
    st("smax")
    if kh == 0:
        a("v_lshrrev_b32 v15, 5, v1")
        a("v_bfe_u32 v16, v1, 2, 2")
        a("v_lshl_add_u32 v15, v15, 3, v16")
        a("v_mul_u32_u24 v15, 192, v15")
        a("v_add_u32 v15, %d, v15" % XBASE)
        a("v_bfe_u32 v16, v1, 4, 1")
        a("v_and_b32 v17, 3, v1")
        a("v_lshrrev_b32 v19, 1, v17")
        a("v_lshl_add_u32 v19, v16, 1, v19")
        a("v_and_b32 v14, 1, v17")
        a("v_lshl_add_u32 v19, v14, 2, v19")
        a("v_lshl_add_u32 v2, v19, 3, v15")
        a("s_lshl_b32 s32, s6, 6")
        a("v_add_u32 v2, s32, v2")
        a("v_lshl_add_u32 v3, v16, 5, v15")
        a("v_lshl_add_u32 v3, v17, 3, v3")
    a("s_waitcnt lgkmcnt(0)")
    a("s_barrier")
    if kh == 1:
        a("s_branch K1_fin")
        return
    a("s_cmp_ge_u32 s6, 2")
    a("s_cbranch_scc1 K1_fin")
    for ks in range(8):
        b = 64 + 8 * ks
        a("ds_read_b64_tr_b16 v[%d:%d], v2 offset:%d" % (b, b + 1, ks * 3072))
        a("ds_read_b64_tr_b16 v[%d:%d], v2 offset:%d" % (b + 2, b + 3, ks * 3072 + 768))
        a("ds_read_b64_tr_b16 v[%d:%d], v3 offset:%d" % (b + 4, b + 5, ks * 3072 + 128))
        a("ds_read_b64_tr_b16 v[%d:%d], v3 offset:%d" % (b + 6, b + 7, ks * 3072 + 768 + 128))
    a("s_lshl_b32 s32, s5, 4")
    a("s_add_u32 s32, s32, s4")
    a("s_lshl_b32 s32, s32, 1")
    a("s_add_u32 s32, s32, s6")
    a("s_lshl_b32 s32, s32, 12")
    a("s_add_u32 s32, s32, 0x%x" % WS_KVP)
    for ks in range(8):
        b = 64 + 8 * ks
        a("s_waitcnt lgkmcnt(%d)" % min(15, 4 * (7 - ks)))
        a("v_mfma_f32_32x32x16_bf16 v[144:159], v[%d:%d], v[%d:%d], %s" % (b, b + 3, b + 4, b + 7, "0" if ks == 0 else "v[144:159]"))
    for q in range(4):
        a("buffer_store_dwordx4 v[%d:%d], v18, s[24:27], s32 offen offset:%d %s" % (144 + 4*q, 147 + 4*q, q * 1024, STF))
    a("s_branch K1_fin")

def gen_k1b(a, name="k1b_kernel"):
    kernel_head(a, name)
    a("s_cmp_ge_u32 s2, 16")
    a("s_cbranch_scc1 K1B_done")
    load_srds(a, [("ws", 24)])
    a("v_and_b32 v1, 63, v0")
    a("v_lshrrev_b32 v2, 6, v0")
    a("v_lshlrev_b32 v3, 11, v2")
    a("v_lshl_add_u32 v3, v1, 4, v3")
    a("s_lshl_b32 s4, s2, 17")
    a("s_add_u32 s4, s4, 0x%x" % WS_KVP)
    for rb in range(16):
        a("buffer_load_dwordx4 v[%d:%d], v3, s[24:27], s4 offen" % (8 + 8*rb, 11 + 8*rb))
        a("buffer_load_dwordx4 v[%d:%d], v3, s[24:27], s4 offen offset:1024" % (12 + 8*rb, 15 + 8*rb))
        a("s_add_u32 s4, s4, 8192")
    for rb in range(1, 16):
        a("s_waitcnt vmcnt(%d)" % (2 * (15 - rb)))
        for i in range(8):
            a("v_add_f32 v%d, v%d, v%d" % (8 + i, 8 + i, 8 + 8*rb + i))
    for d in range(4):
        a("v_cvt_pk_bf16_f32 v%d, v%d, v%d" % (4 + d, 8 + 2*d, 9 + 2*d))
    a("v_lshlrev_b32 v3, 4, v0")
    a("s_lshl_b32 s4, s2, 12")
    a("s_add_u32 s4, s4, 0x%x" % WS_KVA)
    a("buffer_store_dwordx4 v[4:7], v3, s[24:27], s4 offen")
    a.label("K1B_done")
    a("s_endpgm")
    return kernel_desc(name, 144, 32), "; @launch kernel=%s grid=(16,1,1) block=(256,1,1) lds=0" % name
```

```python
from gen_common import *

def gen_k2(a, name="k2_kernel"):
    kernel_head(a, name)
    a("s_cmp_ge_u32 s2, 256")
    a("s_cbranch_scc1 K2_done")
    st = Stamper(a, 2)
    st.real(); st("start")
    load_srds(a, [("x", 8), ("ws", 24)])
    a("v_lshrrev_b32 v1, 6, v0")
    a("v_readfirstlane_b32 s3, v1")
    a("v_and_b32 v1, 63, v0")
    a("s_and_b32 s30, s2, 7")
    a("s_lshr_b32 s31, s2, 3")
    a("s_lshl_b32 s4, s30, 3")
    a("s_lshr_b32 s32, s31, 2")
    a("s_add_u32 s4, s4, s32")
    a("s_and_b32 s5, s31, 3")
    a("s_lshl_b32 s6, s5, 2")
    a("s_add_u32 s6, s6, s3")
    a("v_lshlrev_b32 v2, 4, v1")
    PH, KV, OA, XR = 16, 80, 144, 208
    a("s_lshl_b32 s32, s4, 4")
    a("s_lshl_b32 s33, s3, 2")
    a("s_add_u32 s32, s32, s33")
    a("s_lshl_b32 s32, s32, 12")
    if WS_PHIQ: a("s_add_u32 s32, s32, 0x%x" % WS_PHIQ)
    a("s_lshl_b32 s33, s3, 14")
    a("s_add_u32 s33, s33, 0x%x" % WS_KVA)
    for hh in range(4):
        for ks in range(4):
            a.vm("buffer_load_dwordx4 v[%d:%d], v2, s[24:27], s32 offen offset:%d" % (PH + (hh*4+ks)*4, PH + (hh*4+ks)*4 + 3, ks * 1024), "p%d" % hh)
            a.vm("buffer_load_dwordx4 v[%d:%d], v2, s[24:27], s33 offen offset:%d" % (KV + (hh*4+ks)*4, KV + (hh*4+ks)*4 + 3, ks * 1024), "p%d" % hh)
        if hh < 3:
            a("s_add_u32 s32, s32, 4096")
            a("s_add_u32 s33, s33, 4096")
    a("v_and_b32 v3, 31, v1")
    a("s_lshl_b32 s32, s4, 5")
    a("v_add_u32 v3, s32, v3")
    a("v_mul_u32_u24 v3, 896, v3")
    a("v_lshrrev_b32 v4, 5, v1")
    a("v_mad_u32_u24 v3, v4, 28, v3")
    a("s_mul_i32 s34, s6, 56")
    a("v_add_u32 v3, s34, v3")
    a.vm("buffer_load_dwordx4 v[%d:%d], v3, s[8:11], 0 offen" % (XR, XR + 3), "x")
    a.vm("buffer_load_dwordx3 v[%d:%d], v3, s[8:11], 0 offen offset:16" % (XR + 4, XR + 6), "x")
    a("s_lshl_b32 s32, s6, 15")
    a("s_add_u32 s32, s32, 0x%x" % WS_WOP)
    for ks in range(32):
        a.vm("buffer_load_dwordx4 a[%d:%d], v2, s[24:27], s32 offen offset:%d" % (4*ks, 4*ks + 3, (ks & 3) * 1024), "w%d" % ks)
        if ks & 3 == 3 and ks < 31: a("s_add_u32 s32, s32, 4096")
    a("s_lshl_b32 s32, s3, 13")
    a("v_add_u32 v5, s32, v2")
    st("issued")
    for hh in range(4):
        a.vm_wait("p%d" % hh)
        if hh == 0: st("p0")
        acc = OA + 16 * hh
        for ks in range(4):
            a("v_mfma_f32_32x32x16_bf16 v[%d:%d], v[%d:%d], v[%d:%d], %s" % (acc, acc + 15, KV + (hh*4+ks)*4, KV + (hh*4+ks)*4 + 3, PH + (hh*4+ks)*4, PH + (hh*4+ks)*4 + 3, "0" if ks == 0 else "v[%d:%d]" % (acc, acc + 15)))
    for hh in range(4):
        acc = OA + 16 * hh
        a("v_add_f32 v6, 0x%08x, v%d" % (np.float32(1e-6).view(np.uint32), acc + 14))
        a("v_rcp_f32 v6, v6")
        for r in range(14):
            a("v_mul_f32 v%d, v%d, v6" % (acc + r, acc + r))
        for d in range(7):
            a("v_cvt_pk_bf16_f32 v%d, v%d, v%d" % (216 + 8*(hh & 1) + d, acc + 2*d, acc + 2*d + 1))
        a("v_mov_b32 v%d, 0" % (216 + 8*(hh & 1) + 7))
        a("ds_write_b128 v5, v[%d:%d] offset:%d" % (216 + 8*(hh & 1), 219 + 8*(hh & 1), hh * 2048))
        a("ds_write_b128 v5, v[%d:%d] offset:%d" % (220 + 8*(hh & 1), 223 + 8*(hh & 1), hh * 2048 + 1024))
    st("o")
    a("s_waitcnt lgkmcnt(0)")
    a("s_barrier")
    st("bar")
    for ks in range(32):
        a("ds_read_b128 v[%d:%d], v2 offset:%d" % (16 + 4*ks, 19 + 4*ks, ks * 1024))
    for ks in range(32):
        a.vm_wait("w%d" % ks, "lgkmcnt(%d)" % min(15, 31 - ks))
        a("v_mfma_f32_32x32x16_bf16 v[144:159], a[%d:%d], v[%d:%d], %s" % (4*ks, 4*ks + 3, 16 + 4*ks, 19 + 4*ks, "0" if ks == 0 else "v[144:159]"))
    st("gemm")
    a.vm_wait("x")
    for d in range(7):
        a("v_lshlrev_b32 v6, 16, v%d" % (XR + d))
        a("v_and_b32 v7, 0xffff0000, v%d" % (XR + d))
        a("v_add_f32 v6, v6, v%d" % (144 + 2*d))
        a("v_add_f32 v7, v7, v%d" % (145 + 2*d))
        a("v_cvt_pk_bf16_f32 v%d, v6, v7" % (216 + d))
        if d == 0:
            a("v_add_f32 v8, v6, v7")
            a("v_mul_f32 v9, v6, v6")
            a("v_fmac_f32 v9, v7, v7")
        else:
            a("v_add_f32 v8, v8, v6")
            a("v_fmac_f32 v9, v6, v6")
            a("v_add_f32 v8, v8, v7")
            a("v_fmac_f32 v9, v7, v7")
    a("v_mov_b32 v10, v8")
    a("v_mov_b32 v11, v9")
    a("v_permlane32_swap_b32 v8, v10")
    a("v_permlane32_swap_b32 v9, v11")
    a("v_add_f32 v8, v8, v10")
    a("v_add_f32 v9, v9, v11")
    a("v_and_b32 v10, 31, v1")
    a("v_lshlrev_b32 v10, 7, v10")
    a("s_lshl_b32 s32, s4, 12")
    a("s_lshl_b32 s33, s6, 3")
    a("s_add_u32 s32, s32, s33")
    a("s_add_u32 s32, s32, 0x%x" % WS_ST)
    a("buffer_store_dwordx2 v[8:9], v10, s[24:27], s32 offen")
    a("s_mov_b32 s32, 0x%x" % WS_HR)
    a("buffer_store_dwordx4 v[216:219], v3, s[24:27], s32 offen")
    a("buffer_store_dwordx3 v[220:222], v3, s[24:27], s32 offen offset:16")
    a("s_mul_i32 s33, s4, %d" % (28 * 1024))
    a("s_add_u32 s33, s33, 0x%x" % WS_HF)
    a("s_mul_i32 s34, s6, 14")
    for d in range(7):
        a("s_add_u32 s35, s34, %d" % (2 * d))
        a("s_lshr_b32 s36, s35, 3")
        a("s_lshl_b32 s36, s36, 10")
        a("s_and_b32 s35, s35, 7")
        a("s_lshl_b32 s35, s35, 1")
        a("s_add_u32 s36, s36, s35")
        a("s_add_u32 s36, s36, s33")
        a("buffer_store_dword v%d, v2, s[24:27], s36 offen" % (216 + d))
    st("end"); st.real(); st.dump("s3", (250, 251))
    a.label("K2_done")
    a("s_endpgm")
    return kernel_desc(name, 256 + 128, 102, 256), "; @launch kernel=%s grid=(256,1,1) block=(256,1,1) lds=32768" % name
```

```python
from gen_common import *

RING = 148
BUDGET = int(os.environ.get('K3BUDGET', 16))
CSL = RING * 1024
K3_LDS = CSL + 1024
L2E = 1.4426950408889634
def f32(x): return "0x%08x" % np.float32(x).view(np.uint32)

def gen_k3(a, name="k3_kernel"):
    kernel_head(a, name)
    a("s_cmp_ge_u32 s2, 256")
    a("s_cbranch_scc1 K3_done")
    st = Stamper(a, 3)
    st.real(); st("start")
    load_srds(a, [("ws", 24)])
    a("v_lshrrev_b32 v1, 6, v0")
    a("v_readfirstlane_b32 s3, v1")
    a("v_and_b32 v1, 63, v0")
    a("s_and_b32 s30, s2, 7")
    a("s_lshr_b32 s31, s2, 3")
    a("s_and_b32 s4, s30, 1")
    a("s_lshl_b32 s4, s4, 3")
    a("s_and_b32 s32, s31, 7")
    a("s_add_u32 s4, s4, s32")
    a("s_lshr_b32 s5, s30, 1")
    a("s_lshl_b32 s5, s5, 2")
    a("s_lshr_b32 s32, s31, 3")
    a("s_add_u32 s5, s5, s32")
    a("v_lshlrev_b32 v2, 4, v1")
    a("s_lshl_b32 s6, s4, 2")
    a("s_add_u32 s6, s6, s3")
    a("s_mul_i32 s7, s5, %d" % (196 * 1024))
    a("s_add_u32 s7, s7, 0x%x" % WS_WGU)
    a("s_mul_i32 s8, s3, 3072")
    a("s_lshl_b32 s10, s3, 12")
    a("s_add_u32 s11, s7, s8")
    a("s_add_u32 s12, s7, s10")
    a("s_mul_i32 s13, s6, %d" % (28 * 1024))
    a("s_add_u32 s13, s13, 0x%x" % WS_HF)
    ACT = 32; ACCB = 124; CS = 220; T = 236
    groups = [(12 * g, 12) for g in range(7)] + [(84 + 16 * g, 16) for g in range(7)]
    def gof(n):
        for gi, (b, l) in enumerate(groups):
            if b <= n < b + l: return gi
    slot = lambda n: n if n < RING else n - RING
    def wdma_ops(gi):
        b, l = groups[gi]
        k = l // 4
        ops = []
        for q in range(k):
            pre = []
            if q == 0:
                pre = ["s_add_u32 s33, s%d, %d" % (11 if k == 3 else 12, b * 1024), "s_add_u32 m0, s%d, %d" % (8 if k == 3 else 10, slot(b) * 1024)]
            ops.append((pre, "buffer_load_dwordx4 v2, s[24:27], s33 offen offset:%d lds" % (q * 1024), "g%d" % gi, []))
        return ops
    def act_ops(u):
        ops = []
        for s in range(4 * u, 4 * u + 4):
            ops.append(([], "buffer_load_dwordx4 a[%d:%d], v2, s[24:27], s13 offen offset:%d" % (ACT + 4*s, ACT + 4*s + 3, (s & 3) * 1024), "a%d" % s, ["s_add_u32 s13, s13, 4096"] if s & 3 == 3 else []))
        return ops
    def emit_vm(op):
        pre, txt, tag, post = op
        for x in pre: a(x)
        a.vm(txt, tag)
        for x in post: a(x)
    NPRE = int(os.environ.get("K3PRE", 2))
    for u in range(NPRE):
        for op in wdma_ops(u) + act_ops(u): emit_vm(op)
    vmpend = []
    for u in range(NPRE, 3): vmpend += wdma_ops(u) + act_ops(u)
    a("s_mul_i32 s32, s5, 896")
    a("s_add_u32 s32, s32, 0x%x" % WS_CS)
    a("s_mov_b32 m0, %d" % CSL)
    a.vm("buffer_load_dwordx4 v2, s[24:27], s32 offen lds", "g3")
    a("v_and_b32 v6, 31, v1")
    a("v_lshlrev_b32 v6, 7, v6")
    a("v_lshrrev_b32 v7, 5, v1")
    a("v_lshl_add_u32 v6, v7, 6, v6")
    a("s_lshl_b32 s32, s6, 12")
    a("s_add_u32 s32, s32, 0x%x" % WS_ST)
    for q in range(4):
        a.vm("buffer_load_dwordx4 v[%d:%d], v6, s[24:27], s32 offen offset:%d" % (16 + 4*q, 19 + 4*q, 16 * q), "stat")
    a("v_lshrrev_b32 v3, 5, v1")
    a("v_lshlrev_b32 v3, 4, v3")
    a("v_add_u32 v3, %d, v3" % CSL)
    a("v_add_u32 v4, 61440, v2")
    a("v_add_u32 v5, 122880, v2")
    a("s_mul_i32 s9, s6, 112")
    a("s_mul_i32 s32, s5, 7")
    a("s_add_u32 s9, s9, s32")
    a("s_lshl_b32 s9, s9, 10")
    a("s_add_u32 s9, s9, 0x%x" % WS_HH)
    a("s_add_u32 s14, s9, 4096")
    sched = []
    for p in K3_PASSES:
        for s in range(28):
            for tl in p: sched.append((k3_stream(tl, s), tl, s))
    assert [x[0] for x in sched] == list(range(196))
    accof = {0: 0, 1: 1, 2: 2, 3: 3, 4: 4, 5: 5, 6: 0}
    NW = 8; P = 6
    lq = []
    def lds(text, tag):
        a(text); lq.append(tag)
    def lds_wait(tag):
        nonlocal lq
        if tag not in lq: return
        last = max(i for i, t in enumerate(lq) if t == tag)
        n = len(lq) - 1 - last
        a("s_waitcnt lgkmcnt(%d)" % min(n, 15))
        lq = lq[len(lq) - n:] if n else []
    def aread(n):
        off = slot(n) * 1024
        r = 2
        if off >= 122880: r = 5; off -= 122880
        elif off >= 61440: r = 4; off -= 61440
        b = 4 * (n % NW)
        lds("ds_read_b128 a[%d:%d], v%d offset:%d" % (b, b + 3, r, off), "f%d" % n)
    def epilogue_ops(tl):
        acc = ACCB + 16 * accof[tl]
        ops = []
        for q in range(4):
            ops.append(("lds", "ds_read_b128 v[%d:%d], v3 offset:%d" % (CS + 4*q, CS + 4*q + 3, tl * 128 + q * 32)))
        ops.append(("wait_cs", None))
        for r in range(16):
            ops.append(("v", "v_fmac_f32 v%d, v10, v%d" % (acc + r, CS + r)))
        for r in range(8):
            ops.append(("v", "v_mul_f32 v%d, v8, v%d" % (T + r, acc + r)))
        for r in range(8):
            ops.append(("v", "v_exp_f32 v%d, v%d" % (T + r, T + r)))
        for r in range(8):
            ops.append(("v", "v_fma_f32 v%d, v%d, v11, v11" % (T + r, T + r)))
        for r in range(8):
            ops.append(("v", "v_rcp_f32 v%d, v%d" % (T + r, T + r)))
        for r in range(8):
            ops.append(("v", "v_mul_f32 v%d, v%d, v%d" % (T + r, T + r, acc + 8 + r)))
        for d in range(4):
            ops.append(("v", "v_cvt_pk_bf16_f32 v%d, v%d, v%d" % (T + 8 + d, T + 2*d, T + 2*d + 1)))
        ops.append(("st", "buffer_store_dwordx4 v[%d:%d], v2, s[24:27], s%d offen offset:%d %s" % (T + 8, T + 11, 9 if tl < 4 else 14, (tl & 3) * 1024, STF)))
        return ops
    st("issued")
    next_g = 3
    def open_group(gi):
        nonlocal next_g, vmpend
        while any(op[2] == "g%d" % gi for op in vmpend): emit_vm(vmpend.pop(0))
        a.vm_wait("g%d" % gi)
        a("s_barrier")
        if next_g < len(groups):
            vmpend += wdma_ops(next_g)
            if next_g < 7: vmpend += act_ops(next_g)
            next_g += 1
    open_group(0)
    st("g0")
    for n in range(P): aread(n)
    pend = []; done_after = {}
    for idx, p in enumerate(K3_PASSES):
        last_n = k3_stream(p[-1], 27)
        done_after[last_n + 3] = p
    for n, tl, s in sched:
        if n in done_after:
            for t in done_after[n]: pend += epilogue_ops(t)
        if n in (84, 140, 168) and STAMP:
            st("n%d" % n); lq = []
        nn = n + P
        if nn < 196:
            if gof(nn) != gof(nn - 1): open_group(gof(nn))
            aread(nn)
        if n < 84 and tl == 0:
            while any(op[2] == "a%d" % s for op in vmpend): emit_vm(vmpend.pop(0))
            a.vm_wait("a%d" % s)
        if n % 2 == 0: lds_wait("f%d" % min(n + 1, 195))
        acc = ACCB + 16 * accof[tl]; b = 4 * (n % NW)
        if tl == 6 and s == 0:
            assert not any("v%d," % (acc + 15) in (x[1] or "") for x in pend)
        a("v_mfma_f32_32x32x16_bf16 v[%d:%d], a[%d:%d], a[%d:%d], %s" % (acc, acc + 15, b, b + 3, ACT + 4*s, ACT + 4*s + 3, "0" if s == 0 else "v[%d:%d]" % (acc, acc + 15)))
        if n == 40:
            a.vm_wait("stat")
            for q in range(1, 8):
                a("v_add_f32 v16, v16, v%d" % (16 + 2*q))
                a("v_add_f32 v17, v17, v%d" % (17 + 2*q))
            a("v_mov_b32 v6, v16")
            a("v_mov_b32 v7, v17")
            a("v_permlane32_swap_b32 v16, v6")
            a("v_permlane32_swap_b32 v17, v7")
            a("v_add_f32 v10, v16, v6")
            a("v_add_f32 v11, v17, v7")
            a("v_mul_f32 v10, %s, v10" % f32(-1.0 / 448))
            a("v_mul_f32 v11, %s, v11" % f32(1.0 / 448))
            a("v_fma_f32 v11, -v10, v10, v11")
            a("v_max_f32 v11, 0, v11")
            a("v_add_f32 v11, %s, v11" % f32(1e-5))
            a("v_rsq_f32 v8, v11")
            a("v_sqrt_f32 v11, v11")
            a("v_mul_f32 v8, %s, v8" % f32(-L2E))
        if vmpend: emit_vm(vmpend.pop(0))
        k = 0
        while pend and k < BUDGET:
            kind, txt = pend.pop(0)
            if kind == "lds": lds(txt, "cs"); k += 8
            elif kind == "wait_cs": lds_wait("cs"); k += 4
            elif kind == "st": a.vm(txt, "st"); k += 8
            else:
                a(txt); k += 8 if ("v_exp" in txt or "v_rcp" in txt) else 4
    st("loop")
    pend += epilogue_ops(6)
    for kind, txt in pend:
        if kind == "lds": lds(txt, "cs")
        elif kind == "wait_cs": lds_wait("cs")
        elif kind == "st": a.vm(txt, "st")
        else: a(txt)
    st("end"); st.real()
    st.dump("s3", (250, 251))
    a.label("K3_done")
    a("s_endpgm")
    return kernel_desc(name, 256 + 144, 102, 256), "; @launch kernel=%s grid=(256,1,1) block=(256,1,1) lds=%d" % (name, K3_LDS)
```

```python
from gen_common import *

def gen_k4(a, name="k4_kernel"):
    kernel_head(a, name)
    a("s_cmp_ge_u32 s2, 224")
    a("s_cbranch_scc1 K4_done")
    st = Stamper(a, 4)
    st.real(); st("start")
    load_srds(a, [("out", 8), ("ws", 24)])
    a("v_lshrrev_b32 v1, 6, v0")
    a("v_readfirstlane_b32 s3, v1")
    a("v_and_b32 v1, 63, v0")
    a("s_and_b32 s30, s2, 7")
    a("s_lshr_b32 s31, s2, 3")
    a("s_mul_i32 s32, s31, 37")
    a("s_lshr_b32 s32, s32, 8")
    a("s_mul_i32 s33, s32, 7")
    a("s_sub_u32 s5, s31, s33")
    a("s_lshl_b32 s4, s30, 2")
    a("s_add_u32 s4, s4, s32")
    a("v_lshlrev_b32 v2, 4, v1")
    a("s_mul_i32 s32, s3, %d" % (28 * 1024))
    a("s_mul_i32 s12, s4, %d" % (224 * 1024))
    a("s_add_u32 s12, s12, s32")
    a("s_add_u32 s12, s12, 0x%x" % WS_HH)
    a("s_add_u32 s13, s12, %d" % (112 * 1024))
    a("s_mul_i32 s14, s5, %d" % (224 * 1024))
    a("s_add_u32 s14, s14, s32")
    a("s_add_u32 s14, s14, 0x%x" % WS_WDP)
    a("s_add_u32 s15, s14, %d" % (112 * 1024))
    a("s_lshr_b32 s32, s3, 1")
    a("s_lshl_b32 s33, s4, 1")
    a("s_add_u32 s32, s32, s33")
    a("s_lshl_b32 s32, s32, 5")
    a("v_and_b32 v3, 31, v1")
    a("v_add_u32 v3, s32, v3")
    a("v_mul_u32_u24 v3, 896, v3")
    a("v_lshrrev_b32 v4, 5, v1")
    a("v_lshl_add_u32 v3, v4, 5, v3")
    a("s_and_b32 s32, s3, 1")
    a("s_lshl_b32 s33, s5, 1")
    a("s_add_u32 s32, s32, s33")
    a("s_lshl_b32 s32, s32, 6")
    a("v_add_u32 v3, s32, v3")
    a("s_mov_b32 s16, 0x%x" % WS_HR)
    a.vm("buffer_load_dwordx4 v[8:11], v3, s[24:27], s16 offen", "h")
    a.vm("buffer_load_dwordx4 v[12:15], v3, s[24:27], s16 offen offset:16", "h")
    W = 15
    def loads(k):
        b = 16 + 16 * (k % W)
        if k and k % 4 == 0:
            for r in (12, 13, 14, 15): a("s_add_u32 s%d, s%d, 4096" % (r, r))
        for i, sr in enumerate((14, 12, 15, 13)):
            a.vm("buffer_load_dwordx4 v[%d:%d], v2, s[24:27], s%d offen offset:%d" % (b + 4*i, b + 4*i + 3, sr, (k & 3) * 1024), "k%d" % k)
    for k in range(W): loads(k)
    st("issued")
    for k in range(28):
        b = 16 + 16 * (k % W)
        a.vm_wait("k%d" % k)
        if k in (0, 7, 14, 21): st("k%d" % k)
        for tb in range(2):
            for cb in range(2):
                t = 2 * tb + cb
                A = b + 8 * cb; B = b + 4 + 8 * tb
                a("v_mfma_f32_32x32x16_bf16 a[%d:%d], v[%d:%d], v[%d:%d], %s" % (16*t, 16*t + 15, A, A + 3, B, B + 3, "0" if k == 0 else "a[%d:%d]" % (16*t, 16*t + 15)))
        if k + W < 28: loads(k + W)
    st("loop")
    a("s_lshl_b32 s32, s3, 14")
    a("v_add_u32 v5, s32, v2")
    for t in range(4):
        for q in range(4):
            a("ds_write_b128 v5, a[%d:%d] offset:%d" % (16*t + 4*q, 16*t + 4*q + 3, t * 4096 + q * 1024))
    a("s_lshl_b32 s32, s3, 12")
    a("v_add_u32 v5, s32, v2")
    a("s_waitcnt lgkmcnt(0)")
    a("s_barrier")
    for sw in range(4):
        for q in range(4):
            a("ds_read_b128 v[%d:%d], v5 offset:%d" % (16 + 16*sw + 4*q, 19 + 16*sw + 4*q, sw * 16384 + q * 1024))
    a("s_waitcnt lgkmcnt(8)")
    for r in range(16): a("v_add_f32 v%d, v%d, v%d" % (16 + r, 16 + r, 32 + r))
    a("s_waitcnt lgkmcnt(0)")
    for r in range(16): a("v_add_f32 v%d, v%d, v%d" % (48 + r, 48 + r, 64 + r))
    for r in range(16): a("v_add_f32 v%d, v%d, v%d" % (16 + r, 16 + r, 48 + r))
    for d in range(8):
        a("v_lshlrev_b32 v6, 16, v%d" % (8 + d))
        a("v_and_b32 v7, 0xffff0000, v%d" % (8 + d))
        a("v_add_f32 v6, v6, v%d" % (16 + 2*d))
        a("v_add_f32 v7, v7, v%d" % (17 + 2*d))
        a("v_cvt_pk_bf16_f32 v%d, v6, v7" % (80 + d))
    a("buffer_store_dwordx4 v[80:83], v3, s[8:11], 0 offen")
    a("buffer_store_dwordx4 v[84:87], v3, s[8:11], 0 offen offset:16")
    st("end"); st.real(); st.dump("s3", (250, 251))
    a.label("K4_done")
    a("s_endpgm")
    return kernel_desc(name, 256 + 64, 102, 256), "; @launch kernel=%s grid=(224,1,1) block=(256,1,1) lds=65536" % name
```

```python
import numpy as np
MB = 1 << 20
S, D, H, DH, F = 2048, 448, 16, 28, 1792
WS_PHIQ = 0
WS_KVP = 4 * MB
WS_KVA = 6 * MB
WS_WOP = 7 * MB
WS_WGU = 8 * MB
WS_CS = 12 * MB
WS_WDP = 13 * MB
WS_HF = 16 * MB
WS_HR = 18 * MB
WS_HH = 20 * MB
WS_ST = 12 * MB + 512 * 1024
WS_FLAG = 12 * MB + 896 * 1024
WS_SIZE = 32 * MB

def drow(g, r):
    return (r >> 2) * 8 + 4 * g + (r & 3)

def k3_kcol(s, g, j):
    sig = 8 * s + j
    c = sig // 14; r = sig % 14
    return 28 * c + 14 * g + r

def o_d(g, r):
    if r < 12: return 4 * (2 * (r >> 2) + g) + (r & 3)
    if r < 14: return 24 + 2 * g + (r - 12)
    return None

K3_PASSES = [(0, 1, 2), (3, 4), (5,), (6,)]
def k3_stream(tl, s):
    base = 0
    for p in K3_PASSES:
        if tl in p: return base + len(p) * s + p.index(tl)
        base += 28 * len(p)

def pack_gu(wg, wu):
    out = np.zeros((16, 196, 64, 8), dtype=wg.dtype)
    for ft in range(112):
        for s in range(28):
            n = k3_stream(ft % 7, s)
            for g in range(2):
                for j in range(8):
                    k = k3_kcol(s, g, j)
                    out[ft // 7, n, g*32:g*32+16, j] = wg[k, 16*ft:16*ft+16]
                    out[ft // 7, n, g*32+16:g*32+32, j] = wu[k, 16*ft:16*ft+16]
    return out.reshape(112, 28, 64, 8)

def pack_dn(wd):
    out = np.zeros((14, 112, 64, 8), dtype=wd.dtype)
    i = np.arange(32)
    col = 16 * ((i >> 2) & 1) + 4 * (i >> 3) + (i & 3)
    for ct in range(14):
        for ks in range(112):
            for g in range(2):
                for j in range(8):
                    f = 16 * ks + 8 * (j >> 2) + 4 * g + (j & 3)
                    out[ct, ks, g*32:(g+1)*32, j] = wd[f, 32*ct + col]
    return out

def pack_wo(wo):
    out = np.zeros((16, 32, 64, 8), dtype=wo.dtype)
    for c in range(16):
        for ks in range(32):
            head = ks >> 1; sp = ks & 1
            for g in range(2):
                for j in range(8):
                    d = o_d(g, 8 * sp + j)
                    if d is None: continue
                    for i in range(32):
                        q = i >> 3; gp = (i >> 2) & 1; rp = 4 * q + (i & 3)
                        if rp < 14:
                            out[c, ks, g*32 + i, j] = wo[28*head + d, 28*c + 14*gp + rp]
    return out
```

```python
import sys
from gen_common import *
from gen_k0 import gen_k0

def build(kernels, path):
    a = Asm()
    descs = []; launches = []
    for k in kernels:
        d, l = k(a)
        descs.append(d); launches.append(l)
    txt = "\n".join(launches) + "\n.amdgcn_target \"amdgcn-amd-amdhsa--gfx950\"\n.text\n" + a.text() + ".section .rodata,\"a\"\n" + "".join(descs)
    open(path, "w").write(txt)

if __name__ == "__main__":
    ks = []
    try:
        from gen_k1 import gen_k1
        ks += [gen_k1, gen_k0]
        from gen_k2 import gen_k2
        ks += [gen_k2]
        from gen_k3 import gen_k3
        ks += [gen_k3]
        from gen_k4 import gen_k4
        ks += [gen_k4]
    except ImportError as e:
        print("partial:", e)
    build(ks, sys.argv[1] if len(sys.argv) > 1 else "cur.s")
```

```python
from gen_common import *

def gen_k0(a, name="k1b_kernel"):
    kernel_head(a, name)
    a("s_cmp_ge_u32 s2, 185")
    a("s_cbranch_scc1 K0_done")
    a("s_cmp_ge_u32 s2, 16")
    a("s_cbranch_scc1 K0_repack")
    load_srds(a, [("ws", 24)])
    a("v_and_b32 v1, 63, v0")
    a("v_lshrrev_b32 v2, 6, v0")
    a("v_lshlrev_b32 v3, 11, v2")
    a("v_lshl_add_u32 v3, v1, 4, v3")
    a("s_lshl_b32 s4, s2, 17")
    a("s_add_u32 s4, s4, 0x%x" % WS_KVP)
    for rb in range(16):
        a("buffer_load_dwordx4 v[%d:%d], v3, s[24:27], s4 offen" % (8 + 8*rb, 11 + 8*rb))
        a("buffer_load_dwordx4 v[%d:%d], v3, s[24:27], s4 offen offset:1024" % (12 + 8*rb, 15 + 8*rb))
        a("s_add_u32 s4, s4, 8192")
    for rb in range(1, 16):
        a("s_waitcnt vmcnt(%d)" % (2 * (15 - rb)))
        for i in range(8):
            a("v_add_f32 v%d, v%d, v%d" % (8 + i, 8 + i, 8 + 8*rb + i))
    for d in range(4):
        a("v_cvt_pk_bf16_f32 v%d, v%d, v%d" % (4 + d, 8 + 2*d, 9 + 2*d))
    a("v_lshlrev_b32 v3, 4, v0")
    a("s_lshl_b32 s4, s2, 12")
    a("s_add_u32 s4, s4, 0x%x" % WS_KVA)
    a("buffer_store_dwordx4 v[4:7], v3, s[24:27], s4 offen")
    a("v_lshlrev_b32 v3, 2, v0")
    a("v_mov_b32 v4, 0")
    a("s_lshl_b32 s4, s2, 10")
    a("s_add_u32 s4, s4, 0x%x" % WS_FLAG)
    a("buffer_store_dword v4, v3, s[24:27], s4 offen")
    a("s_branch K0_done")
    a.label("K0_repack")
    a("s_sub_u32 s2, s2, 16")
    load_srds(a, [("wg", 8), ("wu", 12), ("wd", 16), ("wo", 20), ("ws", 24)])
    a("s_mov_b32 s30, 0x05040100")
    a("s_mov_b32 s31, 0x07060302")
    a("s_mov_b32 s32, 0x3f803f80")
    a("s_cmp_ge_u32 s2, 161")
    a("s_cbranch_scc1 K0_wo")
    a("s_cmp_ge_u32 s2, 112")
    a("s_cbranch_scc1 K0_dn")
    a("v_lshrrev_b32 v3, 7, v0")
    a("v_readfirstlane_b32 s33, v3")
    a("s_cmp_eq_u32 s33, 0")
    a("s_cselect_b32 s4, s8, s12")
    a("s_cselect_b32 s5, s9, s13")
    a("s_mov_b32 s6, s10")
    a("s_mov_b32 s7, s11")
    a("v_and_b32 v4, 127, v0")
    a("v_and_b32 v5, 1, v4")
    a("v_lshrrev_b32 v6, 1, v4")
    a("v_lshrrev_b32 v7, 1, v6")
    a("v_and_b32 v8, 1, v6")
    a("v_cmp_gt_u32 vcc, 112, v4")
    a("s_and_saveexec_b64 s[34:35], vcc")
    a("s_cbranch_execz K0_gu_skip")
    a("s_lshl_b32 s36, s2, 5")
    a("v_lshlrev_b32 v9, 4, v5")
    a("v_add_u32 v9, s36, v9")
    a("v_mul_u32_u24 v10, %d, v8" % (14 * 3584))
    a("v_add_u32 v9, v9, v10")
    a("v_lshlrev_b32 v11, 3, v7")
    a("s_movk_i32 s37, 4682")
    a("s_movk_i32 s38, 3584")
    for j in range(8):
        a("v_add_u32 v12, %d, v11" % j)
        a("v_mul_u32_u24 v13, s37, v12")
        a("v_lshrrev_b32 v13, 16, v13")
        a("v_mad_u32_u24 v12, v13, 14, v12")
        a("v_mad_u32_u24 v12, v12, s38, v9")
        a("buffer_load_dwordx4 v[%d:%d], v12, s[4:7], 0 offen" % (16 + 4*j, 19 + 4*j))
    a("s_mul_i32 s36, s2, 147")
    a("s_lshr_b32 s36, s36, 10")
    a("s_mul_i32 s39, s36, 7")
    a("s_sub_u32 s39, s2, s39")
    a("s_mul_i32 s36, s36, 196")
    a("s_mov_b32 s40, s39")
    a("s_mov_b32 s41, 3")
    a("s_cmp_ge_u32 s39, 3")
    a("s_cselect_b32 s41, 2, s41")
    a("s_cselect_b32 s42, 81, 0")
    a("s_add_u32 s40, s40, s42")
    a("s_cmp_ge_u32 s39, 5")
    a("s_cselect_b32 s41, 1, s41")
    a("s_cselect_b32 s40, 140, s40")
    a("s_cmp_ge_u32 s39, 6")
    a("s_cselect_b32 s40, 168, s40")
    a("s_add_u32 s36, s36, s40")
    a("v_mul_u32_u24 v12, s41, v7")
    a("v_add_u32 v12, s36, v12")
    a("v_lshlrev_b32 v12, 6, v12")
    a("v_lshl_add_u32 v12, v8, 5, v12")
    a("v_lshl_add_u32 v12, v3, 4, v12")
    a("v_lshl_add_u32 v12, v5, 3, v12")
    a("v_lshlrev_b32 v12, 4, v12")
    a("s_mov_b32 s36, 0x%x" % WS_WGU)
    a("v_lshlrev_b32 v13, 4, v3")
    a("v_lshl_add_u32 v13, v5, 3, v13")
    a("v_mul_u32_u24 v13, 57, v13")
    a("v_add_u32 v13, v13, v6")
    a("v_lshlrev_b32 v13, 2, v13")
    a("s_waitcnt vmcnt(0)")
    for cc in range(8):
        sel = "s30" if cc % 2 == 0 else "s31"
        for jj in range(4):
            a("v_perm_b32 v%d, v%d, v%d, %s" % (48 + 4*cc + jj, 16 + 4*(2*jj+1) + (cc >> 1), 16 + 4*(2*jj) + (cc >> 1), sel))
    a("v_mov_b32 v14, s32")
    for cc in range(8):
        a("buffer_store_dwordx4 v[%d:%d], v12, s[24:27], s36 offen offset:%d" % (48 + 4*cc, 51 + 4*cc, 16 * cc))
        a("v_mov_b32 v%d, 0" % (80 + cc))
    for jj in range(4):
        for cc in range(8):
            a("v_dot2_f32_bf16 v%d, v%d, v14, v%d" % (80 + cc, 48 + 4*cc + jj, 80 + cc))
    for cc in range(8):
        a("ds_write_b32 v13, v%d offset:%d" % (80 + cc, 4 * 57 * cc))
    a.label("K0_gu_skip")
    a("s_mov_b64 exec, s[34:35]")
    a("s_waitcnt lgkmcnt(0)")
    a("s_barrier")
    a("v_lshrrev_b32 v1, 3, v0")
    a("v_and_b32 v2, 7, v0")
    a("v_mul_u32_u24 v4, 57, v1")
    a("v_mad_u32_u24 v4, v2, 7, v4")
    a("v_lshlrev_b32 v4, 2, v4")
    for i in range(7): a("ds_read_b32 v%d, v4 offset:%d" % (8 + i, 4 * i))
    a("s_waitcnt lgkmcnt(0)")
    for i in range(1, 7): a("v_add_f32 v8, v8, v%d" % (8 + i))
    for sw in (0x041F, 0x081F, 0x101F):
        a("ds_swizzle_b32 v9, v8 offset:0x%x" % sw)
        a("s_waitcnt lgkmcnt(0)")
        a("v_add_f32 v8, v8, v9")
    a("v_cmp_eq_u32 vcc, 0, v2")
    a("s_and_saveexec_b64 s[34:35], vcc")
    a("v_lshlrev_b32 v1, 2, v1")
    a("s_lshl_b32 s36, s2, 7")
    a("s_add_u32 s36, s36, 0x%x" % WS_CS)
    a("buffer_store_dword v8, v1, s[24:27], s36 offen")
    a("s_branch K0_done")
    a.label("K0_dn")
    a("s_sub_u32 s33, s2, 112")
    a("s_lshl_b32 s33, s33, 8")
    a("v_add_u32 v4, s33, v0")
    a("s_mov_b32 s37, %d" % ((1 << 20) // 56 + 1))
    a("v_mul_u32_u24 v6, s37, v4")
    a("v_lshrrev_b32 v6, 20, v6")
    a("v_mul_u32_u24 v5, 56, v6")
    a("v_sub_u32 v5, v4, v5")
    a("v_lshrrev_b32 v7, 1, v6")
    a("v_and_b32 v8, 1, v6")
    a("v_lshlrev_b32 v9, 4, v7")
    a("v_lshl_add_u32 v9, v8, 2, v9")
    a("v_mul_u32_u24 v9, 896, v9")
    a("v_lshl_add_u32 v9, v5, 4, v9")
    for j in range(8):
        a("s_mov_b32 s%d, %d" % (40 + j, (8 * (j >> 2) + (j & 3)) * 896))
    for j in range(8):
        a("buffer_load_dwordx4 v[%d:%d], v9, s[16:19], s%d offen" % (16 + 4*j, 19 + 4*j, 40 + j))
    a("v_lshrrev_b32 v10, 2, v5")
    a("v_mul_u32_u24 v10, 112, v10")
    a("v_add_u32 v10, v10, v7")
    a("v_lshlrev_b32 v10, 6, v10")
    a("v_lshl_add_u32 v10, v8, 5, v10")
    a("v_and_b32 v11, 1, v5")
    a("v_lshl_add_u32 v10, v11, 4, v10")
    a("v_bfe_u32 v11, v5, 1, 1")
    a("v_lshl_add_u32 v10, v11, 2, v10")
    a("v_lshlrev_b32 v12, 4, v10")
    a("s_mov_b32 s36, 0x%x" % WS_WDP)
    a("s_waitcnt vmcnt(0)")
    for cc in range(8):
        sel = "s30" if cc % 2 == 0 else "s31"
        for jj in range(4):
            a("v_perm_b32 v%d, v%d, v%d, %s" % (48 + 4*cc + jj, 16 + 4*(2*jj+1) + (cc >> 1), 16 + 4*(2*jj) + (cc >> 1), sel))
    for cc in range(8):
        a("buffer_store_dwordx4 v[%d:%d], v12, s[24:27], s36 offen offset:%d" % (48 + 4*cc, 51 + 4*cc, (cc >> 2) * 128 + (cc & 3) * 16))
    a("s_branch K0_done")
    a.label("K0_wo")
    a("s_sub_u32 s33, s2, 161")
    a("s_lshl_b32 s33, s33, 8")
    a("v_add_u32 v4, s33, v0")
    a("v_and_b32 v5, 31, v4")
    a("v_lshrrev_b32 v6, 5, v4")
    a("v_lshrrev_b32 v7, 1, v6")
    a("v_and_b32 v8, 1, v6")
    a("v_lshrrev_b32 v9, 1, v7")
    a("v_and_b32 v10, 1, v7")
    a("v_cmp_eq_u32 s[40:41], 0, v10")
    a("v_mul_u32_u24 v11, 28, v5")
    a("v_mul_u32_u24 v12, 28, v9")
    a("v_lshlrev_b32 v13, 2, v8")
    a("v_lshlrev_b32 v14, 1, v8")
    a("v_mov_b32 v15, 0x7000000")
    a("s_movk_i32 s38, 896")
    for j in range(8):
        a("v_add_u32 v88, %d, v13" % (8 * (j >> 2) + (j & 3)))
        if j < 4:
            a("v_add_u32 v89, %d, v13" % (16 + j))
        elif j < 6:
            a("v_add_u32 v89, %d, v14" % (24 + j - 4))
        if j < 6:
            a("v_cndmask_b32 v88, v89, v88, s[40:41]")
            a("v_add_u32 v88, v88, v12")
            a("v_mad_u32_u24 v88, v88, s38, v11")
        else:
            a("v_add_u32 v88, v88, v12")
            a("v_mad_u32_u24 v88, v88, s38, v11")
            a("v_cndmask_b32 v88, v15, v88, s[40:41]")
        a("buffer_load_dwordx4 v[%d:%d], v88, s[20:23], 0 offen" % (16 + 8*j, 19 + 8*j))
        a("buffer_load_dwordx3 v[%d:%d], v88, s[20:23], 0 offen offset:16" % (20 + 8*j, 22 + 8*j))
    a("v_lshrrev_b32 v10, 1, v5")
    a("v_lshl_add_u32 v10, v10, 5, v7")
    a("v_lshlrev_b32 v10, 6, v10")
    a("v_lshl_add_u32 v10, v8, 5, v10")
    a("v_and_b32 v11, 1, v5")
    a("v_lshl_add_u32 v10, v11, 2, v10")
    a("v_lshlrev_b32 v12, 4, v10")
    a("s_mov_b32 s36, 0x%x" % WS_WOP)
    a("s_waitcnt vmcnt(0)")
    for rp in range(16):
        ob = 96 + 4 * rp
        if rp < 14:
            sel = "s30" if rp % 2 == 0 else "s31"
            for jj in range(4):
                a("v_perm_b32 v%d, v%d, v%d, %s" % (ob + jj, 16 + 8*(2*jj+1) + (rp >> 1), 16 + 8*(2*jj) + (rp >> 1), sel))
        else:
            for jj in range(4): a("v_mov_b32 v%d, 0" % (ob + jj))
    for rp in range(16):
        ob = 96 + 4 * rp
        a("buffer_store_dwordx4 v[%d:%d], v12, s[24:27], s36 offen offset:%d" % (ob, ob + 3, (rp >> 2) * 128 + (rp & 3) * 16))
    a.label("K0_done")
    a("s_endpgm")
    return kernel_desc(name, 160, 48), "; @launch kernel=%s grid=(185,1,1) block=(256,1,1) lds=8192" % name
```

```python
from gen_common import *

def gen_k4(a, name="k4_kernel"):
    kernel_head(a, name)
    a("s_cmp_ge_u32 s2, 224")
    a("s_cbranch_scc1 K4_done")
    st = Stamper(a, 4)
    st.real(); st("start")
    load_srds(a, [("out", 8), ("ws", 24)])
    a("v_lshrrev_b32 v1, 6, v0")
    a("v_readfirstlane_b32 s3, v1")
    a("v_and_b32 v1, 63, v0")
    a("s_and_b32 s30, s2, 7")
    a("s_lshr_b32 s31, s2, 3")
    a("s_mul_i32 s32, s31, 37")
    a("s_lshr_b32 s32, s32, 8")
    a("s_mul_i32 s33, s32, 7")
    a("s_sub_u32 s5, s31, s33")
    a("s_lshl_b32 s4, s30, 2")
    a("s_add_u32 s4, s4, s32")
    a("v_lshlrev_b32 v2, 4, v1")
    a("s_mul_i32 s32, s3, %d" % (28 * 1024))
    a("s_mul_i32 s12, s4, %d" % (224 * 1024))
    a("s_add_u32 s12, s12, s32")
    a("s_add_u32 s12, s12, 0x%x" % WS_HH)
    a("s_add_u32 s13, s12, %d" % (112 * 1024))
    a("s_mul_i32 s14, s5, %d" % (224 * 1024))
    a("s_add_u32 s14, s14, s32")
    a("s_add_u32 s14, s14, 0x%x" % WS_WDP)
    a("s_add_u32 s15, s14, %d" % (112 * 1024))
    a("s_lshr_b32 s32, s3, 1")
    a("s_lshl_b32 s33, s4, 1")
    a("s_add_u32 s32, s32, s33")
    a("s_lshl_b32 s32, s32, 5")
    a("v_and_b32 v3, 31, v1")
    a("v_add_u32 v3, s32, v3")
    a("v_mul_u32_u24 v3, 896, v3")
    a("v_lshrrev_b32 v4, 5, v1")
    a("v_lshl_add_u32 v3, v4, 5, v3")
    a("s_and_b32 s32, s3, 1")
    a("s_lshl_b32 s33, s5, 1")
    a("s_add_u32 s32, s32, s33")
    a("s_lshl_b32 s32, s32, 6")
    a("v_add_u32 v3, s32, v3")
    a("s_mov_b32 s16, 0x%x" % WS_HR)
    a.vm("buffer_load_dwordx4 v[8:11], v3, s[24:27], s16 offen", "h")
    a.vm("buffer_load_dwordx4 v[12:15], v3, s[24:27], s16 offen offset:16", "h")
    W = int(os.environ.get('K4W', 8))
    def load_ops(k):
        b = 16 + 16 * (k % W)
        ops = []
        for i, sr in enumerate((14, 12, 15, 13)):
            pre = ["s_add_u32 s%d, s%d, 4096" % (sr, sr)] if (k and k % 4 == 0) else []
            ops.append((pre, "buffer_load_dwordx4 v[%d:%d], v2, s[24:27], s%d offen offset:%d" % (b + 4*i, b + 4*i + 3, sr, (k & 3) * 1024), "k%d" % k))
        return ops
    def emit(op):
        for x in op[0]: a(x)
        a.vm(op[1], op[2])
    for k in range(W - 1):
        for op in load_ops(k): emit(op)
    st("issued")
    for k in range(28):
        b = 16 + 16 * (k % W)
        ops = load_ops(k + W - 1) if k + W - 1 < 28 else []
        a.vm_wait("k%d" % k)
        if k in (0, 7, 14, 21): st("k%d" % k)
        for tb in range(2):
            for cb in range(2):
                t = 2 * tb + cb
                A = b + 8 * cb; B = b + 4 + 8 * tb
                a("v_mfma_f32_32x32x16_bf16 a[%d:%d], v[%d:%d], v[%d:%d], %s" % (16*t, 16*t + 15, A, A + 3, B, B + 3, "0" if k == 0 else "a[%d:%d]" % (16*t, 16*t + 15)))
                if ops: emit(ops.pop(0))
    st("loop")
    a("s_lshl_b32 s32, s3, 14")
    a("v_add_u32 v5, s32, v2")
    for t in range(4):
        for q in range(4):
            a("ds_write_b128 v5, a[%d:%d] offset:%d" % (16*t + 4*q, 16*t + 4*q + 3, t * 4096 + q * 1024))
    a("s_lshl_b32 s32, s3, 12")
    a("v_add_u32 v5, s32, v2")
    a("s_waitcnt lgkmcnt(0)")
    a("s_barrier")
    for sw in range(4):
        for q in range(4):
            a("ds_read_b128 v[%d:%d], v5 offset:%d" % (16 + 16*sw + 4*q, 19 + 16*sw + 4*q, sw * 16384 + q * 1024))
    a("s_waitcnt lgkmcnt(8)")
    for r in range(16): a("v_add_f32 v%d, v%d, v%d" % (16 + r, 16 + r, 32 + r))
    a("s_waitcnt lgkmcnt(0)")
    for r in range(16): a("v_add_f32 v%d, v%d, v%d" % (48 + r, 48 + r, 64 + r))
    for r in range(16): a("v_add_f32 v%d, v%d, v%d" % (16 + r, 16 + r, 48 + r))
    for d in range(8):
        a("v_lshlrev_b32 v6, 16, v%d" % (8 + d))
        a("v_and_b32 v7, 0xffff0000, v%d" % (8 + d))
        a("v_add_f32 v6, v6, v%d" % (16 + 2*d))
        a("v_add_f32 v7, v7, v%d" % (17 + 2*d))
        a("v_cvt_pk_bf16_f32 v%d, v6, v7" % (80 + d))
    a("buffer_store_dwordx4 v[80:83], v3, s[8:11], 0 offen")
    a("buffer_store_dwordx4 v[84:87], v3, s[8:11], 0 offen offset:16")
    st("end"); st.real(); st.dump("s3", (250, 251))
    a.label("K4_done")
    a("s_endpgm")
    return kernel_desc(name, 256 + 64, 102, 256), "; @launch kernel=%s grid=(224,1,1) block=(256,1,1) lds=65536" % name
```

```python
from gen_common import *

RING = 148
BUDGET = int(os.environ.get('K3BUDGET', 16))
CSL = RING * 1024
KF_LDS = CSL + 1024
L2E = 1.4426950408889634
SPIN_MAX = 200000
SIGC = int(os.environ.get('SIGC', 3))
def f32(x): return "0x%08x" % np.float32(x).view(np.uint32)

def gen_kf(a, name="kf_kernel"):
    kernel_head(a, name)
    a("s_cmp_ge_u32 s2, 256")
    a("s_cbranch_scc1 KF_done")
    st = Stamper(a, 3)
    st.real(); st("start")
    load_srds(a, [("ws", 24), ("out", 20)])
    a("v_lshrrev_b32 v1, 6, v0")
    a("v_readfirstlane_b32 s3, v1")
    a("v_and_b32 v1, 63, v0")
    a("s_and_b32 s30, s2, 7")
    a("s_lshr_b32 s31, s2, 3")
    a("s_and_b32 s4, s30, 1")
    a("s_lshl_b32 s4, s4, 3")
    a("s_and_b32 s32, s31, 7")
    a("s_add_u32 s4, s4, s32")
    a("s_lshr_b32 s5, s30, 1")
    a("s_lshl_b32 s5, s5, 2")
    a("s_lshr_b32 s32, s31, 3")
    a("s_add_u32 s5, s5, s32")
    a("v_lshlrev_b32 v2, 4, v1")
    a("s_lshl_b32 s6, s4, 2")
    a("s_add_u32 s6, s6, s3")
    a("s_mul_i32 s7, s5, %d" % (196 * 1024))
    a("s_add_u32 s7, s7, 0x%x" % WS_WGU)
    a("s_mul_i32 s8, s3, 3072")
    a("s_lshl_b32 s10, s3, 12")
    a("s_add_u32 s11, s7, s8")
    a("s_add_u32 s12, s7, s10")
    a("s_mul_i32 s13, s6, %d" % (28 * 1024))
    a("s_add_u32 s13, s13, 0x%x" % WS_HF)
    ACT = 32; ACCB = 124; CS = 220; T = 236
    groups = [(12 * g, 12) for g in range(7)] + [(84 + 16 * g, 16) for g in range(7)]
    def gof(n):
        for gi, (b, l) in enumerate(groups):
            if b <= n < b + l: return gi
    slot = lambda n: n if n < RING else n - RING
    def wdma_ops(gi):
        b, l = groups[gi]
        k = l // 4
        ops = []
        for q in range(k):
            pre = []
            if q == 0:
                pre = ["s_add_u32 s33, s%d, %d" % (11 if k == 3 else 12, b * 1024), "s_add_u32 m0, s%d, %d" % (8 if k == 3 else 10, slot(b) * 1024)]
            ops.append((pre, "buffer_load_dwordx4 v2, s[24:27], s33 offen offset:%d lds" % (q * 1024), "g%d" % gi, []))
        return ops
    def act_ops(u):
        ops = []
        for s in range(4 * u, 4 * u + 4):
            ops.append(([], "buffer_load_dwordx4 a[%d:%d], v2, s[24:27], s13 offen offset:%d" % (ACT + 4*s, ACT + 4*s + 3, (s & 3) * 1024), "a%d" % s, ["s_add_u32 s13, s13, 4096"] if s & 3 == 3 else []))
        return ops
    def emit_vm(op):
        pre, txt, tag, post = op
        for x in pre: a(x)
        a.vm(txt, tag)
        for x in post: a(x)
    NPRE = 2
    for u in range(NPRE):
        for op in wdma_ops(u) + act_ops(u): emit_vm(op)
    vmpend = []
    for u in range(NPRE, 3): vmpend += wdma_ops(u) + act_ops(u)
    a("s_mul_i32 s32, s5, 896")
    a("s_add_u32 s32, s32, 0x%x" % WS_CS)
    a("s_mov_b32 m0, %d" % CSL)
    a.vm("buffer_load_dwordx4 v2, s[24:27], s32 offen lds", "g3")
    a("v_and_b32 v6, 31, v1")
    a("v_lshlrev_b32 v6, 7, v6")
    a("v_lshrrev_b32 v7, 5, v1")
    a("v_lshl_add_u32 v6, v7, 6, v6")
    a("s_lshl_b32 s32, s6, 12")
    a("s_add_u32 s32, s32, 0x%x" % WS_ST)
    for q in range(4):
        a.vm("buffer_load_dwordx4 v[%d:%d], v6, s[24:27], s32 offen offset:%d" % (16 + 4*q, 19 + 4*q, 16 * q), "stat")
    a("v_and_b32 v3, 31, v1")
    a("v_lshlrev_b32 v3, 2, v3")
    a("v_add_u32 v3, %d, v3" % CSL)
    a("v_add_u32 v4, 61440, v2")
    a("v_add_u32 v5, 122880, v2")
    a("s_mul_i32 s9, s6, 112")
    a("s_mul_i32 s32, s5, 7")
    a("s_add_u32 s9, s9, s32")
    a("s_lshl_b32 s9, s9, 10")
    a("s_add_u32 s9, s9, 0x%x" % WS_HH)
    a("s_add_u32 s14, s9, 4096")
    a("s_min_u32 s33, s31, 27")
    a("s_mul_i32 s32, s33, 37")
    a("s_lshr_b32 s32, s32, 8")
    a("s_mul_i32 s17, s32, 7")
    a("s_sub_u32 s17, s33, s17")
    a("s_lshl_b32 s16, s30, 2")
    a("s_add_u32 s16, s16, s32")
    a("s_mul_i32 s32, s3, %d" % (28 * 1024))
    a("s_mul_i32 s40, s16, %d" % (224 * 1024))
    a("s_add_u32 s40, s40, s32")
    a("s_add_u32 s40, s40, 0x%x" % WS_HH)
    a("s_mul_i32 s41, s17, %d" % (224 * 1024))
    a("s_add_u32 s41, s41, s32")
    a("s_add_u32 s41, s41, 0x%x" % WS_WDP)
    a("s_lshl_b32 s42, s4, 10")
    a("s_add_u32 s42, s42, 0x%x" % WS_FLAG)
    a("s_lshr_b32 s47, s16, 1")
    a("s_lshl_b32 s47, s47, 10")
    a("s_add_u32 s47, s47, 0x%x" % WS_FLAG)
    a("v_mov_b32 v9, 0")
    order = [(fl, tl) for tls in ((0, 1, 2), (3, 4), (5, 6)) for tl in tls for fl in range(4)]
    def wd_reg(o, cb):
        i = 2 * o + cb
        return ("a", 144 + 4 * i) if i < 28 else ("v", 12 + 4 * (i - 28))
    wd_ops = []
    for o, (fl, tl) in enumerate(order):
        rel = fl * 7 + tl
        for cb in range(2):
            R, b = wd_reg(o, cb)
            off = rel * 1024 + cb * 112 * 1024
            wd_ops.append((["s_add_u32 s43, s41, %d" % (off & ~4095)], "buffer_load_dwordx4 %s[%d:%d], v2, s[24:27], s43 offen offset:%d" % (R, b, b + 3, off & 4095), "wd", []))
    def signal(stage, sfx=""):
        lab = "KF_sig%d%s" % (stage, sfx)
        a("s_cmp_lg_u32 s3, 0")
        a("s_cbranch_scc1 %s" % lab)
        a.skip_begin()
        a("v_mov_b32 v6, 1")
        a("s_mov_b64 exec, 1")
        a("buffer_atomic_add v6, v9, s[24:27], s42 offen offset:%d sc1" % (stage * 256))
        a("s_mov_b64 exec, -1")
        a.skip_end(lab)
    def poll_issue(stage, reg):
        a.vm("buffer_load_dword v%d, v9, s[24:27], s47 offen offset:%d sc1" % (reg, stage * 256), "poll%d" % stage)
    def poll_check(stage, reg):
        a.vm_wait("poll%d" % stage)
        a("v_readfirstlane_b32 s44, v%d" % reg)
        a("s_cmp_ge_u32 s44, 16")
        a("s_cbranch_scc1 KF_ok%d" % stage)
        a("s_mov_b32 s45, 0")
        a.label("KF_spin%d" % stage)
        a("s_sleep 2")
        a("buffer_load_dword v%d, v9, s[24:27], s47 offen offset:%d sc1" % (reg, stage * 256))
        a("s_waitcnt vmcnt(0)")
        a("v_readfirstlane_b32 s44, v%d" % reg)
        a("s_add_u32 s45, s45, 1")
        a("s_cmp_ge_u32 s45, %d" % SPIN_MAX)
        a("s_cbranch_scc1 KF_ok%d" % stage)
        a("s_cmp_lt_u32 s44, 16")
        a("s_cbranch_scc1 KF_spin%d" % stage)
        a.label("KF_ok%d" % stage)
    sched = []
    for p in K3_PASSES:
        for s in range(28):
            for tl in p: sched.append((k3_stream(tl, s), tl, s))
    accof = {0: 0, 1: 1, 2: 2, 3: 3, 4: 4, 5: 5, 6: 0}
    NW = 8; P = 6
    lq = []
    def lds(text, tag):
        a(text); lq.append(tag)
    def lds_wait(tag):
        nonlocal lq
        if tag not in lq: return
        last = max(i for i, t in enumerate(lq) if t == tag)
        n = len(lq) - 1 - last
        a("s_waitcnt lgkmcnt(%d)" % min(n, 15))
        lq = lq[len(lq) - n:] if n else []
    def aread(n):
        off = slot(n) * 1024
        r = 2
        if off >= 122880: r = 5; off -= 122880
        elif off >= 61440: r = 4; off -= 61440
        b = 4 * (n % NW)
        lds("ds_read_b128 a[%d:%d], v%d offset:%d" % (b, b + 3, r, off), "f%d" % n)
    def epilogue_ops(tl):
        acc = ACCB + 16 * accof[tl]
        ops = []
        for r in range(8): ops.append(("v", "v_mul_f32 v%d, v8, v%d" % (T + r, acc + r)))
        for r in range(8): ops.append(("v", "v_exp_f32 v%d, v%d" % (T + r, T + r)))
        for r in range(8): ops.append(("v", "v_fma_f32 v%d, v%d, v11, v11" % (T + r, T + r)))
        for r in range(8): ops.append(("v", "v_rcp_f32 v%d, v%d" % (T + r, T + r)))
        for r in range(8): ops.append(("v", "v_mul_f32 v%d, v%d, v%d" % (T + r, T + r, acc + 8 + r)))
        for d in range(4): ops.append(("v", "v_cvt_pk_bf16_f32 v%d, v%d, v%d" % (T + 8 + d, T + 2*d, T + 2*d + 1)))
        ops.append(("st%d" % tl, "buffer_store_dwordx4 v[%d:%d], v2, s[24:27], s%d offen offset:%d sc1" % (T + 8, T + 11, 9 if tl < 4 else 14, (tl & 3) * 1024)))
        return ops
    stored = set()
    def run_op(kind, txt):
        if kind == "lds": lds(txt, "cs"); return 8
        if kind == "wait_cs": lds_wait("cs"); return 4
        if kind.startswith("st"): a.vm(txt, kind); stored.add(int(kind[2:])); return 8
        a(txt); return 8 if ("v_exp" in txt or "v_rcp" in txt) else 4
    st("issued")
    next_g = 3
    def open_group(gi):
        nonlocal next_g, vmpend
        while any(op[2] == "g%d" % gi for op in vmpend): emit_vm(vmpend.pop(0))
        tags = ["g%d" % gi]
        if gi == 13:
            assert {0, 1, 2} <= stored
            tags += ["st0", "st1", "st2"]
        a.vm_wait(tags)
        a("s_barrier")
        if gi == 13: signal(0)
        if next_g < len(groups):
            vmpend += wdma_ops(next_g)
            if next_g < 7: vmpend += act_ops(next_g)
            next_g += 1
    open_group(0)
    st("g0")
    for n in range(P): aread(n)
    pend = []; done_after = {}
    for p in K3_PASSES: done_after[k3_stream(p[-1], 27) + 3] = p
    for n, tl, s in sched:
        if n in done_after:
            for t in done_after[n]: pend += epilogue_ops(t)
        if n in (84, 140, 168) and STAMP:
            st("n%d" % n); lq = []
        nn = n + P
        if nn < 196:
            if gof(nn) != gof(nn - 1): open_group(gof(nn))
            aread(nn)
        if n < 84 and tl == 0:
            while any(op[2] == "a%d" % s for op in vmpend): emit_vm(vmpend.pop(0))
            a.vm_wait("a%d" % s)
        if n % 2 == 0: lds_wait("f%d" % min(n + 1, 195))
        acc = ACCB + 16 * accof[tl]; b = 4 * (n % NW)
        a("v_mfma_f32_32x32x16_bf16 v[%d:%d], a[%d:%d], a[%d:%d], %s" % (acc, acc + 15, b, b + 3, ACT + 4*s, ACT + 4*s + 3, "0" if s == 0 else "v[%d:%d]" % (acc, acc + 15)))
        if n == 40:
            a.vm_wait("stat")
            for q in range(1, 8):
                a("v_add_f32 v16, v16, v%d" % (16 + 2*q))
                a("v_add_f32 v17, v17, v%d" % (17 + 2*q))
            a("v_mov_b32 v6, v16")
            a("v_mov_b32 v7, v17")
            a("v_permlane32_swap_b32 v16, v6")
            a("v_permlane32_swap_b32 v17, v7")
            a("v_add_f32 v10, v16, v6")
            a("v_add_f32 v11, v17, v7")
            a("v_mul_f32 v10, %s, v10" % f32(-1.0 / 448))
            a("v_mul_f32 v11, %s, v11" % f32(1.0 / 448))
            a("v_fma_f32 v11, -v10, v10, v11")
            a("v_max_f32 v11, 0, v11")
            a("v_add_f32 v11, %s, v11" % f32(1e-5))
            a("v_rsq_f32 v8, v11")
            a("v_sqrt_f32 v11, v11")
            a("v_mul_f32 v8, %s, v8" % f32(-L2E))
            a("v_cvt_pk_bf16_f32 v248, v10, v10")
            a("v_lshlrev_b32 v6, 16, v248")
            a("v_sub_f32 v6, v10, v6")
            a("v_cvt_pk_bf16_f32 v249, v6, 0")
            a("v_cmp_gt_u32 vcc, 32, v1")
            a("v_cndmask_b32 v248, 0, v248, vcc")
            a("v_cndmask_b32 v249, 0, v249, vcc")
            a("v_mov_b32 v250, 0")
            a("v_mov_b32 v251, 0")
            a("v_mov_b32 v%d, 0" % (CS + 14))
            a("v_mov_b32 v%d, 0" % (CS + 15))
        if n == 44:
            for t in range(7): lds("ds_read_b32 v%d, v3 offset:%d" % (16 + t, t * 128), "cs")
        if n == 50:
            lds_wait("cs")
            for t in range(7):
                a("v_cvt_pk_bf16_f32 v%d, v%d, 0" % (CS + 2*t + 1, 16 + t))
                a("v_lshlrev_b32 v6, 16, v%d" % (CS + 2*t + 1))
                a("v_sub_f32 v6, v%d, v6" % (16 + t))
                a("v_cvt_pk_bf16_f32 v%d, v%d, v6" % (CS + 2*t, 16 + t))
        if s == 27:
            a("v_mfma_f32_32x32x16_bf16 v[%d:%d], v[%d:%d], v[248:251], v[%d:%d]" % (acc, acc + 15, CS + 2*tl, CS + 2*tl + 3, acc, acc + 15))
        if vmpend: emit_vm(vmpend.pop(0))
        elif n >= 70 and wd_ops and (n % 2 == 0 or n >= 150): emit_vm(wd_ops.pop(0))
        if n == 190: poll_issue(0, 7)
        k = 0
        while pend and k < BUDGET:
            k += run_op(*pend.pop(0))
    while wd_ops: emit_vm(wd_ops.pop(0))
    st("loop")
    print('KF epilogue backlog at loop end:', len(pend))
    while not ({3, 4} <= stored): run_op(*pend.pop(0))
    pend += epilogue_ops(6)
    W = 8
    HW = 0; ACC4 = 64
    def hh_ops(o):
        fl, tl = order[o]
        rel = fl * 7 + tl
        ops = []
        for tb in range(2):
            b = HW + 8 * (o % W) + 4 * tb
            off = rel * 1024 + tb * 112 * 1024
            ops.append((["s_add_u32 s43, s40, %d" % (off & ~4095)], "buffer_load_dwordx4 a[%d:%d], v2, s[24:27], s43 offen offset:%d" % (b, b + 3, off & 4095), "h%d" % o, []))
        return ops
    a.vm_wait(["st3", "st4"])
    a("s_barrier")
    signal(1)
    poll_check(0, 7)
    for o in range(W - 1):
        for op in hh_ops(o): emit_vm(op)
    for kind, txt in pend: run_op(kind, txt)
    st("p3end")
    a("s_cmp_ge_u32 s31, 28")
    a("s_cbranch_scc0 KF_p4")
    a("s_waitcnt vmcnt(0)")
    a("s_barrier")
    signal(2, "i")
    a("s_branch KF_fin")
    a.label("KF_p4")
    a("s_lshr_b32 s32, s3, 1")
    a("s_lshl_b32 s33, s16, 1")
    a("s_add_u32 s32, s32, s33")
    a("s_lshl_b32 s32, s32, 5")
    a("v_and_b32 v3, 31, v1")
    a("v_add_u32 v3, s32, v3")
    a("v_mul_u32_u24 v3, 896, v3")
    a("v_lshrrev_b32 v4, 5, v1")
    a("v_lshl_add_u32 v3, v4, 5, v3")
    a("s_and_b32 s32, s3, 1")
    a("s_lshl_b32 s33, s17, 1")
    a("s_add_u32 s32, s32, s33")
    a("s_lshl_b32 s32, s32, 6")
    a("v_add_u32 v3, s32, v3")
    a("s_mov_b32 s46, 0x%x" % WS_HR)
    poll_issue(1, 7)
    a.vm("buffer_load_dwordx4 v[124:127], v3, s[24:27], s46 offen", "hr")
    a.vm("buffer_load_dwordx4 v[128:131], v3, s[24:27], s46 offen offset:16", "hr")
    for o in range(28):
        on = o + W - 1
        if on == 12: poll_check(1, 7)
        if on == 20: poll_check(2, 8)
        if on == 16: poll_issue(2, 8)
        ops = hh_ops(on) if on < 28 else []
        a.vm_wait(["h%d" % o, "wd"])
        if o == SIGC:
            a.vm_wait(["st5", "st6"])
            a("s_barrier")
            signal(2)
        if o in (7, 14, 21): st("k%d" % o)
        for tb in range(2):
            for cb in range(2):
                t = 2 * tb + cb
                R, A = wd_reg(o, cb)
                B = HW + 8 * (o % W) + 4 * tb
                c = "0" if o == 0 else "a[%d:%d]" % (ACC4 + 16*t, ACC4 + 16*t + 15)
                a("v_mfma_f32_32x32x16_bf16 a[%d:%d], %s[%d:%d], a[%d:%d], %s" % (ACC4 + 16*t, ACC4 + 16*t + 15, R, A, A + 3, B, B + 3, c))
                if ops and cb == 1: emit_vm(ops.pop(0))
    st("p4loop")
    a("s_lshl_b32 s32, s3, 14")
    a("v_add_u32 v5, s32, v2")
    for t in range(4):
        a("s_cmp_eq_u32 s3, %d" % t)
        a("s_cbranch_scc1 KF_own%d" % t)
        a.skip_begin()
        for q in range(4):
            a("ds_write_b128 v5, a[%d:%d] offset:%d" % (ACC4 + 16*t + 4*q, ACC4 + 16*t + 4*q + 3, t * 4096 + q * 1024))
        a("s_branch KF_nxt%d" % t)
        a.skip_end("KF_own%d" % t)
        a.skip_begin()
        for r in range(16): a("v_accvgpr_read_b32 v%d, a%d" % (16 + r, ACC4 + 16*t + r))
        a.skip_end("KF_nxt%d" % t)
    a("s_lshl_b32 s32, s3, 12")
    for k in range(1, 4):
        a("s_add_u32 s33, s3, %d" % k)
        a("s_and_b32 s33, s33, 3")
        a("s_lshl_b32 s33, s33, 14")
        a("s_add_u32 s33, s33, s32")
        a("v_add_u32 v%d, s33, v2" % (4 + k))
    a("s_waitcnt lgkmcnt(0)")
    a("s_barrier")
    for k in range(1, 4):
        for q in range(4):
            a("ds_read_b128 v[%d:%d], v%d offset:%d" % (16 + 16*k + 4*q, 19 + 16*k + 4*q, 4 + k, q * 1024))
    a("s_waitcnt lgkmcnt(8)")
    for r in range(16): a("v_add_f32 v%d, v%d, v%d" % (16 + r, 16 + r, 32 + r))
    a("s_waitcnt lgkmcnt(0)")
    for r in range(16): a("v_add_f32 v%d, v%d, v%d" % (48 + r, 48 + r, 64 + r))
    for r in range(16): a("v_add_f32 v%d, v%d, v%d" % (16 + r, 16 + r, 48 + r))
    a.vm_wait("hr")
    for d in range(8):
        a("v_lshlrev_b32 v6, 16, v%d" % (124 + d))
        a("v_and_b32 v7, 0xffff0000, v%d" % (124 + d))
        a("v_add_f32 v6, v6, v%d" % (16 + 2*d))
        a("v_add_f32 v7, v7, v%d" % (17 + 2*d))
        a("v_cvt_pk_bf16_f32 v%d, v6, v7" % (80 + d))
    a("buffer_store_dwordx4 v[80:83], v3, s[20:23], 0 offen")
    a("buffer_store_dwordx4 v[84:87], v3, s[20:23], 0 offen offset:16")
    a.label("KF_fin")
    if STAMP:
        st.n = 13
    st("end"); st.real()
    st.dump("s3", (252, 253))
    a.label("KF_done")
    a("s_endpgm")
    return kernel_desc(name, 512, 102, 256), "; @launch kernel=%s grid=(256,1,1) block=(256,1,1) lds=%d" % (name, KF_LDS)
```

```python
import sys
from gen_common import *
from gen_k0 import gen_k0

def build(kernels, path):
    a = Asm()
    descs = []; launches = []
    for k in kernels:
        d, l = k(a)
        descs.append(d); launches.append(l)
    txt = "\n".join(launches) + "\n.amdgcn_target \"amdgcn-amd-amdhsa--gfx950\"\n.text\n" + a.text() + ".section .rodata,\"a\"\n" + "".join(descs)
    open(path, "w").write(txt)

if __name__ == "__main__":
    ks = []
    try:
        from gen_k1 import gen_k1
        ks += [gen_k1, gen_k0]
        from gen_k2 import gen_k2
        ks += [gen_k2]
        if os.environ.get("NOFUSE"):
            from gen_k3 import gen_k3
            ks += [gen_k3]
            from gen_k4 import gen_k4
            ks += [gen_k4]
        else:
            from gen_kf import gen_kf
            ks += [gen_kf]
    except ImportError as e:
        print("partial:", e)
    build(ks, sys.argv[1] if len(sys.argv) > 1 else "cur.s")
```
